```python
import torch

def _softmax(x, axis=-1):
    return torch.softmax(x, dim=axis)
def _gelu(x):
    return torch.nn.functional.gelu(x, approximate="tanh")
def _silu(x):
    return torch.nn.functional.silu(x)
def _sigmoid(x):
    return torch.sigmoid(x)
def _layernorm(x, axis=-1, eps=1e-5):
    m = x.mean(dim=axis, keepdim=True)
    v = x.var(dim=axis, keepdim=True, unbiased=False)
    return (x - m) / torch.sqrt(v + eps)
def _scatter_add(tgt, idx, src, axis=0):
    return tgt.clone().index_add_(axis, idx, src)
def _segment_sum(src, seg, n):
    out = torch.zeros((n,) + src.shape[1:], dtype=src.dtype)
    return out.index_add_(0, seg, src)
def _pad(x, pw):
    flat = tuple(v for pair in reversed(pw) for v in pair)
    return torch.nn.functional.pad(x, flat)

kernel_name = 'interleave_layers__linear_kernel_hedgehog__glu_gated_reglu__prompt'

def setup_inputs():

    _w = (lambda a: (lambda t: t.to(torch.bfloat16) if t.is_floating_point() else t)(torch.as_tensor(a)))
    def _A_setup():
        B, S, D, H = 1, 2048, 512, 32
        Dh = D // H
        return {
            "x": _w((lambda *s: torch.randn(*s, dtype=torch.bfloat16) * 0.05)(B, S, D)),
            "wqkv": _w((lambda *s: torch.randn(*s, dtype=torch.bfloat16) * 0.4)(D, 3 * D)),
            "w_phi": _w((lambda *s: torch.randn(*s, dtype=torch.bfloat16) * 0.4)(H, Dh, Dh) * (Dh ** -0.5)),
            "wo": _w((lambda *s: torch.randn(*s, dtype=torch.bfloat16) * 0.05)(D, D)),
        }
    _A_in = _A_setup()

    def _B_setup():
        B, S, D, F = 1, 2048, 512, 1376
        return {
            "x": _w((lambda *s: torch.randn(*s, dtype=torch.bfloat16) * 0.05)(B, S, D)),
            "W_gate": _w((lambda *s: torch.randn(*s, dtype=torch.bfloat16) * 0.8)(D, F) * (2.0 / D) ** 0.5),
            "W_up": _w((lambda *s: torch.randn(*s, dtype=torch.bfloat16) * 0.8)(D, F) * (2.0 / D) ** 0.5),
            "W_down": _w((lambda *s: torch.randn(*s, dtype=torch.bfloat16) * 0.8)(F, D) * (1.0 / F) ** 0.5),
        }
    _B_in = _B_setup()

    return {
        "A_x": _A_in["x"],
        "A_wqkv": _A_in["wqkv"],
        "A_w_phi": _A_in["w_phi"],
        "A_wo": _A_in["wo"],
        "B_x": _B_in["x"],
        "B_W_gate": _B_in["W_gate"],
        "B_W_up": _B_in["W_up"],
        "B_W_down": _B_in["W_down"],
    }

def reference(A_x, A_wqkv, A_w_phi, A_wo, B_x, B_W_gate, B_W_up, B_W_down):
    def _A_ref(x, wqkv, w_phi, wo):
        B, S, D = x.shape
        H = 32; Dh = D // H
        qkv = (lambda x, *d: x.permute(*d))((x @ wqkv).reshape(B, S, 3, H, Dh), 2, 0, 3, 1, 4)
        q, k, v = qkv[0], qkv[1], qkv[2]
        pq = torch.einsum("bhsd,hdf->bhsf", q, w_phi)
        pk = torch.einsum("bhsd,hdf->bhsf", k, w_phi)
        phi_q = torch.concatenate([_softmax(pq, axis=-1), _softmax(-pq, axis=-1)], axis=-1)
        phi_k = torch.concatenate([_softmax(pk, axis=-1), _softmax(-pk, axis=-1)], axis=-1)
        kv = torch.einsum("bhsf,bhsd->bhfd", phi_k, v)
        z  = torch.einsum("bhsf->bhf", phi_k)
        num = torch.einsum("bhqf,bhfd->bhqd", phi_q, kv)
        den = torch.einsum("bhqf,bhf->bhq", phi_q, z)[..., None] + 1e-6
        o = num / den
        return (lambda x, *d: x.permute(*d))(o, 0, 2, 1, 3).reshape(B, S, D) @ wo

    def _B_ref(x, W_gate, W_up, W_down):
        gate = torch.einsum("bsd,df->bsf", x, W_gate)
        up = torch.einsum("bsd,df->bsf", x, W_up)
        gate = gate * (lambda x, dt: x.to(dt))(gate > 0, gate.dtype)
        h = gate * up
        return torch.einsum("bsf,fd->bsd", h, W_down)

    x = A_x
    x = x + _A_ref(_layernorm(x, axis=-1), A_wqkv, A_w_phi, A_wo)
    x = x + _B_ref(_layernorm(x, axis=-1), B_W_gate, B_W_up, B_W_down)
    x = x + _A_ref(_layernorm(x, axis=-1), A_wqkv, A_w_phi, A_wo)
    x = x + _B_ref(_layernorm(x, axis=-1), B_W_gate, B_W_up, B_W_down)
    return x
```

```python
class Asm:
    def __init__(s): s.l = []; s.n = 0
    def __call__(s, *lines):
        for x in lines:
            for y in x.split('\n'):
                y = y.rstrip()
                if y.strip(): s.l.append(y if y.endswith(':') and not y.startswith(' ') else '    ' + y.strip())
    def label(s, p='L'):
        s.n += 1; return f'{p}_{s.n}'
    def text(s): return '\n'.join(s.l) + '\n'
def head(name):
    return f'.globl {name}\n.p2align 8\n.type {name},@function\n{name}:\n'
def desc(name, vgpr=256, sgpr=102, accum=256):
    return f""".section .rodata,"a"
.p2align 6
.amdhsa_kernel {name}
  .amdhsa_next_free_vgpr {vgpr}
  .amdhsa_next_free_sgpr {sgpr}
  .amdhsa_accum_offset {accum}
  .amdhsa_group_segment_fixed_size 0
  .amdhsa_kernarg_size 88
  .amdhsa_user_sgpr_count 2
  .amdhsa_user_sgpr_kernarg_segment_ptr 1
  .amdhsa_system_sgpr_workgroup_id_x 1
.end_amdhsa_kernel
"""
TOP = '.amdgcn_target "amdgcn-amd-amdhsa--gfx950"\n.text\n'
```

```python
import re
TRANS = ('v_exp_f32','v_log_f32','v_rcp_f32','v_rsq_f32','v_sqrt_f32','v_sin_f32','v_cos_f32')
def regs(op):
    op = op.strip()
    op = re.sub(r'^-', '', op); op = re.sub(r'^abs\((.*)\)$', r'\1', op); op = op.strip('|')
    m = re.fullmatch(r'([vas])\[(\d+):(\d+)\]', op)
    if m: return {(m.group(1), i) for i in range(int(m.group(2)), int(m.group(3)) + 1)}
    m = re.fullmatch(r'([vas])(\d+)', op)
    if m: return {(m.group(1), int(m.group(2)))}
    if op in ('vcc', 'vcc_lo', 'vcc_hi'): return {('s', 'vcc')}
    if op == 'm0': return {('s', 'm0')}
    if op in ('exec', 'exec_lo', 'exec_hi'): return {('s', 'exec')}
    return set()
class I:
    def __init__(s, text):
        s.text = text
        t = text.split(';')[0].strip()
        s.label = t.endswith(':'); s.dir = t.startswith('.')
        s.mn = t.split()[0] if t else ''
        rest = t[len(s.mn):].strip()
        ops = [o.strip() for o in re.split(r',\s*(?![^\[]*\])', rest)] if rest else []
        if ops:
            last = ops[-1].split()
            s.mods = ' '.join(last[1:]); ops[-1] = last[0] if last else ''
        else: s.mods = ''
        s.ops = ops
        mn = s.mn; R = [regs(o) for o in ops]
        s.w = set(); s.r = set(); s.kind = 'other'; s.A = s.B = s.C = set(); s.passes = 0; s.data = set()
        U = lambda l: set().union(*l) if l else set()
        if s.label or s.dir: s.kind = 'meta'
        elif mn.startswith('v_mfma'):
            s.kind = 'mfma'; s.w = R[0]; s.A, s.B, s.C = R[1], R[2], R[3]; s.r = U(R[1:])
            s.passes = 8 if '32x32x16' in mn else 4 if '16x16x32' in mn else 16
            assert 'bf16' in mn
        elif mn.startswith('v_'):
            s.kind = 'valu'
            if 'permlane' in mn and 'swap' in mn: s.w = R[0] | R[1]; s.r = R[0] | R[1]
            elif mn.startswith(('v_add_co', 'v_addc_co', 'v_sub_co', 'v_subb_co')): s.w = R[0] | R[1]; s.r = U(R[2:])
            else:
                s.w = R[0]; s.r = U(R[1:])
                if mn.startswith(('v_fmac', 'v_dot2c', 'v_pk_fmac')) or 'dpp' in mn or 'row_' in s.mods or 'quad_perm' in s.mods: s.r |= R[0]
            s.trans = mn.replace('_e32', '').replace('_e64', '') in TRANS
            s.dpp = 'row_' in s.mods or 'quad_perm' in s.mods or 'dpp' in mn
        elif mn.startswith('ds_'):
            s.kind = 'ds'
            if mn.startswith(('ds_read', 'ds_bpermute', 'ds_swizzle')): s.w = R[0]; s.r = U(R[1:])
            else: s.r = U(R)
        elif mn.startswith(('buffer_', 'global_')):
            s.kind = 'vmem'; s.lds = ' lds' in (' ' + s.mods) or '_lds_' in mn
            if mn in ('buffer_wbl2', 'buffer_inv'): pass
            elif 'load' in mn and not s.lds:
                s.w = R[0]; s.r = U(R[1:])
                if 'd16' in mn: s.r |= R[0]
            else:
                s.r = U(R)
                if 'store' in mn and ('x3' in mn or 'x4' in mn): s.data = R[0] if mn.startswith('buffer') else R[1]
            if s.lds: s.r = s.r | {('s', 'm0')}
        elif mn.startswith('s_'):
            s.kind = 'salu'
            if mn.startswith(('s_cmp', 's_cbranch', 's_branch', 's_waitcnt', 's_nop', 's_barrier', 's_endpgm', 's_sleep', 's_setprio', 's_bitcmp')): s.r = U(R)
            else:
                s.w = R[0] if R else set(); s.r = U(R[1:])
                if 'saveexec' in mn: s.w = s.w | {('s', 'exec')}
        s.states = (int(ops[0], 0) + 1) if mn == 's_nop' else (0 if s.kind == 'meta' else 1)
isv = lambda S: {x for x in S if x[0] in 'va'}
iss = lambda S: {x for x in S if x[0] == 's'}
def need(p, c):
    n = 0
    if p.kind == 'valu':
        pv = isv(p.w); ps = iss(p.w)
        if c.kind == 'mfma' and pv & c.r: n = max(n, 2)
        if c.kind == 'valu':
            if p.trans and not c.trans and pv & (c.r): n = max(n, 1)
            if (c.dpp or 'permlane' in c.mn) and pv & c.r: n = max(n, 2)
            if c.mn.startswith(('v_readlane', 'v_readfirstlane')) and pv & c.r: n = max(n, 1)
            if ps & c.r: n = max(n, 4 if c.mn.startswith(('v_readlane', 'v_writelane')) else 2)
            if ('s', 'vcc') in ps and c.mn.startswith('v_cndmask') and len(c.ops) < 4: n = max(n, 2)
        if p.mn.startswith('v_dot') and pv & (c.r | c.w):
            if not (c.mn == p.mn and len(c.ops) == 4 and not (pv & (regs(c.ops[1]) | regs(c.ops[2])))): n = max(n, 3)
        if p.trans and c.kind in ('ds', 'vmem') and pv & c.r: n = max(n, 1)
        if c.kind == 'vmem' and ps & c.r: n = max(n, 5)
        if c.kind == 'salu' and ps & c.r: n = max(n, 1)
    if p.kind == 'mfma':
        t = {4: 0, 8: 1, 16: 2}[p.passes]
        if c.kind == 'mfma':
            if p.w & (c.A | c.B): n = max(n, (8, 12, 20)[t])
            if p.w & c.C and not (p.w == c.C and p.passes == c.passes): n = max(n, (6, 10, 18)[t])
            if p.w & c.w and not (p.w == c.C and p.passes == c.passes): n = max(n, (6, 10, 18)[t])
        elif c.kind in ('valu', 'ds', 'vmem'):
            if p.w & (c.r | c.w): n = max(n, (8, 12, 20)[t])
            if c.kind == 'valu' and p.C & c.w: n = max(n, (3, 7, 15)[t])
    if p.kind == 'salu' and ('s', 'm0') in p.w and c.kind == 'vmem' and c.lds: n = max(n, 1)
    if p.kind == 'vmem' and p.data and p.data & c.w: n = max(n, 2 if c.kind in ('valu', 'mfma') else 1)
    return n
class E:
    def __init__(s):
        s.ins = []; s.nl = 0; s.vm = 0; s.lg = 0; s.vm_done = 0; s.lg_done = 0; s.nops = 0
    def raw(s, text):
        i = I(text)
        if i.kind != 'meta':
            d = 0; req = 0
            for p in reversed(s.ins):
                if d >= 20: break
                if p.kind != 'meta':
                    req = max(req, need(p, i) - d)
                    d += p.states
            if req > 0:
                s.nops += req
                while req > 0:
                    k = min(req, 16); s.ins.append(I(f's_nop {k-1}')); req -= k
        s.ins.append(i)
        tok = None
        if i.kind == 'vmem': s.vm += 1; tok = ('vm', s.vm)
        if i.kind == 'ds': s.lg += 1; tok = ('lg', s.lg)
        if i.mn == 's_waitcnt':
            m = re.search(r'vmcnt\((\d+)\)', text)
            if m: s.vm_done = max(s.vm_done, s.vm - int(m.group(1)))
            m = re.search(r'lgkmcnt\((\d+)\)', text)
            if m: s.lg_done = max(s.lg_done, s.lg - int(m.group(1)))
        return tok
    def __call__(s, *lines):
        tok = None
        for x in lines:
            for y in x.split('\n'):
                y = y.strip()
                if y and not y.startswith(';'): tok = s.raw(y) or tok
        return tok
    def wait(s, *toks):
        vm = max([t[1] for t in toks if t and t[0] == 'vm'], default=0)
        lg = max([t[1] for t in toks if t and t[0] == 'lg'], default=0)
        parts = []
        if vm > s.vm_done: parts.append(f'vmcnt({min(63, s.vm - vm)})')
        if lg > s.lg_done: parts.append(f'lgkmcnt({min(15, s.lg - lg)})')
        if parts: s.raw('s_waitcnt ' + ' '.join(parts))
    def label(s, p='L'):
        s.nl += 1; return f'{p}_{s.nl}'
    def text(s):
        return '\n'.join((i.text if (i.label or i.dir) else '    ' + i.text) for i in s.ins) + '\n'
def v(b, n=1): return f'v{b}' if n == 1 else f'v[{b}:{b+n-1}]'
def a(b, n=1): return f'a{b}' if n == 1 else f'a[{b}:{b+n-1}]'
def s(b, n=1): return f's{b}' if n == 1 else f's[{b}:{b+n-1}]'
```

```python
from emit import *
from layout import *
NA, NB, NC = 134, 59, 64
K0_GRID = NA + NB + NC
def gen_k0():
    e = E()
    e(f"""
    s_cmp_ge_u32 s2, {K0_GRID}
    s_cbranch_scc1 K0_end
    s_load_dwordx16 s[4:19], s[0:1], 0
    s_load_dwordx2 s[24:25], s[0:1], 80
    v_lshrrev_b32 v1, 6, v0
    v_and_b32 v2, 63, v0
    v_readfirstlane_b32 s3, v1
    v_lshlrev_b32 v3, 4, v2
    v_and_b32 v4, 31, v2
    v_lshrrev_b32 v5, 5, v2
    v_lshrrev_b32 v6, 3, v4
    v_bfe_u32 v7, v4, 2, 1
    v_and_b32 v8, 3, v4
    s_mov_b32 s26, {WS_BYTES}
    s_mov_b32 s27, 0x20000
    s_mov_b32 s31, 0x20000
    s_mov_b32 s35, 0x20000
    s_waitcnt lgkmcnt(0)
    """)
    e(f"""
    s_cmp_ge_u32 s2, 256
    s_cbranch_scc1 K0_nohk
    v_lshlrev_b32 v9, 4, v0
    v_mov_b32 v12, -1
    v_mov_b32 v13, -1
    v_mov_b32 v14, -1
    v_mov_b32 v15, -1
    s_lshl_b32 s36, s2, 13
    s_add_u32 s36, s36, {KVP}
    s_add_u32 s37, s36, 4096
    buffer_store_dwordx4 v[12:15], v9, s[24:27], s36 offen
    buffer_store_dwordx4 v[12:15], v9, s[24:27], s37 offen
    s_lshl_b32 s36, s2, 9
    s_add_u32 s37, s36, {ZP}
    s_add_u32 s38, s36, {FL}
    v_lshlrev_b32 v9, 1, v0
    v_mov_b32 v10, 0
    buffer_store_short v12, v9, s[24:27], s37 offen
    buffer_store_short v10, v9, s[24:27], s38 offen
    K0_nohk:
    s_cmp_ge_u32 s2, {NA + NB}
    s_cbranch_scc1 K0_x
    """)
    e(f"""
    v_lshrrev_b32 v19, 1, v6
    v_and_b32 v18, 1, v6
    v_lshl_add_u32 v18, v18, 2, v8
    v_lshl_add_u32 v16, v7, 3, v18
    v_lshl_add_u32 v16, v19, 4, v16
    v_lshl_add_u32 v17, v6, 2, v8
    v_lshl_add_u32 v17, v7, 4, v17
    s_cmp_ge_u32 s2, {NA}
    s_cbranch_scc1 K0_B
    s_cmp_ge_u32 s2, 48
    s_cbranch_scc1 K0_GU
    """)
    e(f"""
    ; ---- W1 strip: hp = u/3, tile = u%3
    s_mul_i32 s36, s2, 21846
    s_lshr_b32 s36, s36, 16
    s_mul_i32 s37, s36, 3
    s_sub_u32 s37, s2, s37
    s_add_u32 s38, s37, 1
    s_lshl_b32 s38, s38, 10
    s_cmp_eq_u32 s37, 2
    s_cselect_b32 s38, 0, s38
    s_lshl_b32 s39, s36, 6
    s_add_u32 s40, s38, s39
    s_mul_i32 s39, s3, {128 * 3072}
    s_add_u32 s40, s40, s39
    s_mov_b32 s41, {32 * 3072}
    s_mov_b32 s42, 3072
    s_mov_b32 s28, s6
    s_mov_b32 s29, s7
    s_mov_b32 s30, {512 * 3072}
    s_add_u32 s32, s6, 32
    s_addc_u32 s33, s7, 0
    s_mov_b32 s34, {512 * 3072 - 32}
    s_lshl_b32 s43, s2, 15
    s_lshl_b32 s39, s3, 13
    s_add_u32 s43, s43, s39
    s_add_u32 s43, s43, {W1P}
    s_mov_b32 s44, 4096
    s_mov_b32 s45, 2048
    s_mov_b32 s46, 1024
    s_mov_b32 s47, 1
    s_cmp_eq_u32 s37, 1
    s_cselect_b32 s48, 1, 2
    v_mov_b32 v20, v16
    s_branch K0_gen
    K0_GU:
    s_sub_u32 s36, s2, 48
    s_lshl_b32 s40, s36, 5
    s_mul_i32 s39, s3, {128 * 2752}
    s_add_u32 s40, s40, s39
    s_mov_b32 s41, {32 * 2752}
    s_mov_b32 s42, 2752
    s_mov_b32 s28, s14
    s_mov_b32 s29, s15
    s_mov_b32 s30, {512 * 2752}
    s_mov_b32 s32, s16
    s_mov_b32 s33, s17
    s_mov_b32 s34, {512 * 2752}
    s_mul_i32 s37, s36, 21846
    s_lshr_b32 s37, s37, 16
    s_mul_i32 s38, s37, 3
    s_sub_u32 s38, s36, s38
    s_mul_i32 s43, s37, {96 * KB}
    s_lshl_b32 s38, s38, 10
    s_add_u32 s43, s43, s38
    s_mul_i32 s39, s3, {8 * 3072}
    s_add_u32 s43, s43, s39
    s_add_u32 s43, s43, {W3P}
    s_mov_b32 s44, 12288
    s_mov_b32 s45, 6144
    s_mov_b32 s46, 3072
    s_mov_b32 s47, 1
    s_mov_b32 s48, 0
    v_mov_b32 v20, v16
    s_branch K0_gen
    K0_B:
    s_sub_u32 s36, s2, {NA}
    s_mov_b32 s41, 64
    s_mov_b32 s42, 1024
    s_mov_b32 s45, 1024
    s_mov_b32 s46, 2048
    s_mov_b32 s47, 0
    s_mov_b32 s48, 0
    s_cmp_ge_u32 s36, 16
    s_cbranch_scc1 K0_Wd
    s_mov_b32 s28, s10
    s_mov_b32 s29, s11
    s_mov_b32 s30, {512 * 1024}
    s_add_u32 s32, s10, 32
    s_addc_u32 s33, s11, 0
    s_mov_b32 s34, {512 * 1024 - 32}
    s_mov_b32 s44, {32 * 2048}
    s_mov_b32 s43, {W2P}
    v_mov_b32 v20, v17
    s_branch K0_B2
    K0_Wd:
    s_sub_u32 s36, s36, 16
    s_mov_b32 s28, s18
    s_mov_b32 s29, s19
    s_mov_b32 s30, {1376 * 1024}
    s_add_u32 s32, s18, 32
    s_addc_u32 s33, s19, 0
    s_mov_b32 s34, {1376 * 1024 - 32}
    s_mov_b32 s44, {88 * 2048}
    s_mov_b32 s43, {W4P}
    v_mov_b32 v20, v16
    K0_B2:
    s_lshl_b32 s40, s36, 15
    s_lshl_b32 s39, s3, 8
    s_add_u32 s40, s40, s39
    s_lshl_b32 s39, s36, 12
    s_add_u32 s43, s43, s39
    s_mul_i32 s39, s3, s44
    s_lshl_b32 s39, s39, 1
    s_add_u32 s43, s43, s39
    K0_gen:
    v_mul_lo_u32 v20, v20, s42
    v_lshl_add_u32 v20, v5, 4, v20
    """)
    lt = []
    for t in range(4):
        e(f'buffer_load_dwordx4 {v(32+8*t,4)}, v20, s[28:31], s40 offen')
        lt.append(e(f'buffer_load_dwordx4 {v(36+8*t,4)}, v20, s[32:35], s40 offen'))
        if t < 3: e('s_add_u32 s40, s40, s41')
    e(f"""
    s_cmp_eq_u32 s48, 2
    s_cbranch_scc1 K0_Tphi
    v_and_b32 v21, 1, v18
    v_lshlrev_b32 v21, 4, v21
    v_mov_b32 v23, 0x3f80
    v_lshlrev_b32 v21, v21, v23
    v_lshrrev_b32 v22, 1, v18
    s_cmp_eq_u32 s48, 0
    s_cselect_b64 vcc, -1, 0
    v_cndmask_b32 v9, v7, v19, vcc
    v_cndmask_b32 v10, v19, v7, vcc
    v_cmp_eq_u32 vcc, v10, v5
    v_cndmask_b32 v21, 0, v21, vcc
    """)
    for d in range(4):
        e(f'v_cmp_eq_u32 vcc, {d}, v22', f'v_cndmask_b32 v{12+d}, 0, v21, vcc')
    e(f"""
    s_branch K0_Tsel
    K0_Tphi:
    s_mov_b32 s52, s8
    s_mov_b32 s53, s9
    s_mov_b32 s54, 16384
    s_mov_b32 s55, 0x20000
    s_lshl_b32 s39, s36, 10
    v_lshl_add_u32 v21, v6, 2, v8
    v_lshl_add_u32 v21, v5, 7, v21
    v_lshl_add_u32 v21, v7, 8, v21
    v_lshlrev_b32 v21, 1, v21
    """)
    for d in range(4):
        e(f'buffer_load_ushort v{12+d}, v21, s[52:55], s39 offen offset:{64*d}')
        e(f'buffer_load_ushort v{24+d}, v21, s[52:55], s39 offen offset:{64*d+32}')
    e('v_mov_b32 v9, v7', 's_waitcnt vmcnt(0)')
    for d in range(4): e(f'v_lshl_or_b32 v{12+d}, v{24+d}, 16, v{12+d}')
    e("""
    K0_Tsel:
    v_cmp_eq_u32 vcc, 0, v9
    """)
    for d in range(4):
        e(f'v_cndmask_b32 v{24+d}, 0, v{12+d}, vcc')
    e('v_cmp_eq_u32 vcc, 1, v9')
    for d in range(4):
        e(f'v_cndmask_b32 v{28+d}, 0, v{12+d}, vcc')
    for t in range(4):
        e(f's_waitcnt vmcnt({6-2*t})')
        e(f'v_mfma_f32_32x32x16_bf16 {v(64+16*t,16)}, {v(32+8*t,4)}, v[24:27], 0')
        e(f'v_mfma_f32_32x32x16_bf16 {v(64+16*t,16)}, {v(36+8*t,4)}, v[28:31], {v(64+16*t,16)}')
    e("""
    s_nop 15
    s_cmp_eq_u32 s47, 0
    s_cbranch_scc1 K0_store
    """)
    e('v_pk_add_f32 v[12:13], v[64:65], v[66:67]', 'v_pk_add_f32 v[14:15], v[68:69], v[70:71]')
    for i in range(72, 128, 4):
        e(f'v_pk_add_f32 v[12:13], v[12:13], {v(i,2)}', f'v_pk_add_f32 v[14:15], v[14:15], {v(i+2,2)}')
    e(f"""
    v_pk_add_f32 v[12:13], v[12:13], v[14:15]
    v_add_f32 v12, v12, v13
    v_lshlrev_b32 v9, 2, v0
    ds_write_b32 v9, v12
    v_lshlrev_b32 v9, 2, v4
    s_waitcnt lgkmcnt(0)
    s_barrier
    ds_read2_b32 v[12:13], v9 offset0:0 offset1:32
    ds_read2_b32 v[14:15], v9 offset0:64 offset1:96
    ds_read2_b32 v[22:23], v9 offset0:128 offset1:160
    ds_read2_b32 v[10:11], v9 offset0:192 offset1:224
    s_waitcnt lgkmcnt(0)
    v_pk_add_f32 v[12:13], v[12:13], v[14:15]
    v_pk_add_f32 v[10:11], v[10:11], v[22:23]
    v_pk_add_f32 v[12:13], v[12:13], v[10:11]
    v_add_f32 v12, v12, v13
    v_mul_f32 v12, 0xbb000000, v12
    """)
    for i in range(64, 128, 2):
        e(f'v_pk_add_f32 {v(i,2)}, {v(i,2)}, v[12:13] op_sel:[0,0] op_sel_hi:[1,0]')
    e('K0_store:')
    for t in range(4):
        for u in range(2):
            b = 64 + 16 * t + 8 * u
            for d in range(4): e(f'v_cvt_pk_bf16_f32 v{b+d}, v{b+2*d}, v{b+2*d+1}')
            if u == 0:
                if t == 0: e('s_mov_b32 s39, s43')
                if t == 1: e('s_add_u32 s39, s43, s45')
                if t == 2: e('s_add_u32 s43, s43, s44', 's_mov_b32 s39, s43')
                if t == 3: e('s_add_u32 s39, s43, s45')
            else: e('s_add_u32 s39, s39, s46')
            e(f'buffer_store_dwordx4 {v(b,4)}, v3, s[24:27], s39 offen')
    e('s_endpgm')
    e(f"""
    K0_x:
    s_sub_u32 s36, s2, {NA + NB}
    s_mov_b32 s28, s4
    s_mov_b32 s29, s5
    s_mov_b32 s30, {2048 * 1024}
    v_and_b32 v6, 7, v2
    v_lshrrev_b32 v7, 3, v2
    v_lshlrev_b32 v9, 4, v7
    v_lshl_add_u32 v9, v6, 10, v9
    s_lshl_b32 s40, s36, 15
    s_lshl_b32 s39, s3, 13
    s_add_u32 s40, s40, s39
    """)
    lt = [e(f'buffer_load_dwordx4 {v(32+4*fc,4)}, v9, s[28:31], s40 offen offset:{128*fc}') for fc in range(8)]
    e(f"""
    v_lshlrev_b32 v10, 9, v7
    v_lshl_add_u32 v10, v6, 4, v10
    s_lshl_b32 s41, s36, 15
    s_lshl_b32 s39, s3, 7
    s_add_u32 s41, s41, s39
    s_add_u32 s41, s41, {XF}
    v_mov_b32 v12, 0
    v_mov_b32 v13, 0
    s_mov_b32 s42, 0x3f803f80
    """)
    for fc in range(8):
        e.wait(lt[fc])
        e(f'buffer_store_dwordx4 {v(32+4*fc,4)}, v10, s[24:27], s41 offen')
        e('s_add_u32 s41, s41, 4096')
        for d in range(4):
            r = 32 + 4 * fc + d
            e(f'v_dot2_f32_bf16 v12, v{r}, s42, v12', f'v_dot2_f32_bf16 v13, v{r}, v{r}, v13')
    e(f"""
    v_lshlrev_b32 v11, 2, v7
    v_lshl_add_u32 v11, v6, 5, v11
    s_lshl_b32 s41, s36, 11
    s_lshl_b32 s39, s3, 8
    s_add_u32 s41, s41, s39
    s_add_u32 s41, s41, {ST}
    s_nop 4
    buffer_store_dword v12, v11, s[24:27], s41 offen
    buffer_store_dword v13, v11, s[24:27], s41 offen offset:1024
    K0_end:
    s_endpgm
    """)
    return e
if __name__ == '__main__':
    from agen import head, desc, TOP
    e = gen_k0()
    txt = f'; @launch kernel=k0_kernel grid=({K0_GRID},1,1) block=(256,1,1) lds=1024\n' + TOP + head('k0_kernel') + e.text() + desc('k0_kernel', 128, 64, 128)
    open('k0.s', 'w').write(txt)
    print('nops', e.nops)
```

```python
from emit import *
from layout import *
R1 = 96 * KB; R2 = 128 * KB
MF = 'v_mfma_f32_32x32x16_bf16'; MF16 = 'v_mfma_f32_16x16x32_bf16'
LOG2E = 0x3fb8aa3b
class Cfg:
    stamps = False
    D1 = 10
    D3 = 10
    D4 = 10
    gather_at = 20
    tmo = 1 << 16
def gen_k1(cfg, name='K1'):
    e = E()
    SRD = 's[4:7]'
    st = {'n': 0, 'names': []}
    def stamp(nm):
        if not cfg.stamps: return
        i = st['n']; st['n'] += 1; st['names'].append(nm)
        e('s_waitcnt lgkmcnt(0)', 's_memtime s[62:63]', 's_waitcnt lgkmcnt(0)', f'v_writelane_b32 v7, s62, {i}')
    def ldsaddr(off):
        return (f'v{off >> 16}', off & 0xffff)
    class Stream:
        def __init__(s): s.q = []
        def pop(s, n=1):
            for _ in range(n):
                if s.q: s.q.pop(0)()
        def flush(s): s.pop(len(s.q))
    def frag_loads(dst, n, sreg, toks, stride=1024, sc=''):
        per = 4096 // stride; q = []
        for i in range(n):
            def f(i=i):
                if i and i % per == 0: e(f's_add_u32 {sreg}, {sreg}, 4096')
                toks[i] = e(f'buffer_load_dwordx4 {dst(i)}, v0, {SRD}, {sreg} offen offset:{(i % per) * stride} {sc}')
            q.append(f)
        return q
    def dma_loads(n, sreg, mreg, toks):
        q = []
        for i in range(n):
            def f(i=i):
                e(f's_add_u32 m0, {mreg}, {4096 * i}')
                if i: e(f's_add_u32 {sreg}, {sreg}, 4096')
                toks[i] = e(f'buffer_load_dwordx4 v0, {SRD}, {sreg} offen lds')
            q.append(f)
        return q
    def flag_store(sreg):
        l1, l2 = e.label('Limp'), e.label('Lfl')
        e(f's_mov_b64 exec, 1', 's_cmp_eq_u32 s24, 0', f's_cbranch_scc1 {l1}')
        t = e(f'buffer_store_dword v5, off, {SRD}, {sreg}')
        e(f'{l2}:', 's_mov_b64 exec, -1')
        cold.append(f"""{l1}:
            buffer_wbl2 sc1
            s_waitcnt vmcnt(0)
            buffer_store_dword v5, off, {SRD}, {sreg} sc1
            s_branch {l2}""")
        return t
    def poll_issue(vaddr, sreg):
        return e(f'buffer_load_dword v4, {vaddr}, {SRD}, {sreg} offen sc1')
    def poll_check(tok, vaddr, sreg, mask):
        l1, l2, l3 = e.label('Lspin'), e.label('Lok'), e.label('Linv')
        e.wait(tok)
        e('v_cmp_eq_u32 vcc, 0, v4')
        e(f's_and_b64 vcc, vcc, {mask}' if mask else 's_nop 0')
        e(f's_cbranch_vccnz {l1}', f'{l1}_r:', 's_cmp_eq_u32 s24, 0', f's_cbranch_scc1 {l3}', f'{l2}:')
        cold.append(f"""{l1}:
            s_mov_b32 s60, 0
            {l1}_l:
            buffer_load_dword v4, {vaddr}, {SRD}, {sreg} offen sc1
            s_add_u32 s60, s60, 1
            s_cmp_ge_u32 s60, {cfg.tmo}
            s_cbranch_scc1 {name}_fail
            s_waitcnt vmcnt(0)
            v_cmp_eq_u32 vcc, 0, v4
            s_nop 1
            {f's_and_b64 vcc, vcc, {mask}' if mask else 's_nop 0'}
            s_cbranch_vccnz {l1}_l
            s_branch {l1}_r
            {l3}:
            buffer_inv sc1
            s_waitcnt vmcnt(0)
            s_branch {l2}""")
    cold = []
    e(f"""
    s_cmp_ge_u32 s2, 256
    s_cbranch_scc1 {name}_end
    s_load_dwordx2 s[8:9], s[0:1], 0
    s_load_dwordx4 s[12:15], s[0:1], 64
    s_load_dwordx2 s[4:5], s[0:1], 80
    v_lshrrev_b32 v1, 6, v0
    v_and_b32 v0, 63, v0
    v_readfirstlane_b32 s3, v1
    v_and_b32 v3, 31, v0
    v_lshlrev_b32 v3, 2, v3
    v_lshlrev_b32 v0, 4, v0
    v_add_u32 v1, 0x10000, v0
    v_add_u32 v2, 0x20000, v0
    v_mov_b32 v5, 1
    v_mov_b32 v7, 0
    s_and_b32 s18, s2, 7
    s_lshr_b32 s19, s2, 3
    s_lshr_b32 s20, s19, 4
    s_and_b32 s21, s19, 15
    s_lshr_b32 s22, s19, 3
    s_and_b32 s23, s19, 7
    s_lshl_b32 s30, s18, 3
    s_add_u32 s27, s30, s3
    s_lshl_b32 s31, s20, 2
    s_add_u32 s25, s27, s31
    s_add_u32 s26, s30, s22
    s_lshl_b32 s28, s3, 10
    s_mov_b32 s6, {WS_BYTES}
    s_mov_b32 s7, 0x20000
    s_mov_b32 s10, {2 * MB}
    s_mov_b32 s11, 0x20000
    s_mov_b32 s24, 1
    s_getreg_b32 s29, hwreg(HW_REG_XCC_ID)
    s_and_b32 s29, s29, 15
    s_add_u32 s29, s29, 1
    s_waitcnt lgkmcnt(0)
    s_mov_b32 s16, s14
    s_mov_b32 s17, s15
    s_mov_b32 s14, {2 * MB}
    s_mov_b32 s15, 0x20000
    """)
    stamp('start')
    def w1_dma(tile, region, toks, sreg='s40', mreg='s41'):
        e(f's_mul_i32 {sreg}, s21, {96 * KB}', f's_add_u32 {sreg}, {sreg}, s28', f's_add_u32 {sreg}, {sreg}, {W1P + tile * 32 * KB}',
          f's_add_u32 {mreg}, s28, {region}')
        return dma_loads(8, sreg, mreg, toks)
    tWk, tWv = {}, {}
    for f in w1_dma(0, R1, tWk): f()
    for f in w1_dma(1, R2, tWv): f()
    lh = e.label('Lh')
    e(f"""
    s_cmp_lg_u32 s3, 0
    s_cbranch_scc1 {lh}
    s_lshl_b32 s30, s18, 7
    s_lshl_b32 s31, s19, 2
    s_add_u32 s30, s30, s31
    s_add_u32 s30, s30, {HELLO}
    v_mov_b32 v4, s29
    s_mov_b64 exec, 1
    """)
    e.ins.append(I(f'buffer_store_dword v4, off, {SRD}, s30 sc1'))
    e('s_mov_b64 exec, -1', f'{lh}:')
    def addr_rowmajor(dst):
        e(f'v_and_b32 v6, 0x70, v0', f'v_lshlrev_b32 v6, 6, v6', f'v_lshrrev_b32 {dst}, 7, v0', f'v_lshl_add_u32 {dst}, {dst}, 4, v6')
    def soff_rowmajor(sreg):
        e(f's_lshl_b32 {sreg}, s26, 15', 's_lshl_b32 s31, s3, 13', f's_add_u32 {sreg}, {sreg}, s31', 's_lshl_b32 s31, s23, 7', f's_add_u32 {sreg}, {sreg}, s31')
    addr_rowmajor('v216'); soff_rowmajor('s30')
    e(f's_add_u32 s31, s30, {4 * 32 * KB}')
    e('buffer_load_dwordx4 v[184:187], v216, s[8:11], s30 offen')
    tRes = e('buffer_load_dwordx4 v[188:191], v216, s[8:11], s31 offen')

    bgW3t, bgW2t, bgW4t = {}, {}, {}
    for L in range(2):
        last = L == 1
        XB = 8; aK, aV, aQ, EB, RING = 136, 152, 168, 184, 232
        e('v_lshlrev_b32 v217, 1, v0')
        e('s_lshl_b32 s42, s25, 15', f's_add_u32 s42, s42, {XF + 2 * L * 2 * MB}')
        e('s_lshl_b32 s43, s25, 11', f's_add_u32 s43, s43, {ST + 2 * L * ST_L}')
        if L == 1:
            e('s_lshl_b32 s44, s25, 7', f's_add_u32 s44, s44, {FL + FL_X2 * 8192}')
            t = poll_issue('v3', 's44'); poll_check(t, 'v3', 's44', None)
            stamp('x2polled')
        tX = {}
        xs = Stream(); xs.q = frag_loads(lambda i: v(XB + 4 * i, 4), 32, 's42', tX)
        xs.pop(cfg.D1)
        if L == 0:
            e.wait(tRes)
            for i in range(8):
                e(f'v_lshlrev_b32 v192, 16, v{184+i}', f'v_and_b32 v193, 0xffff0000, v{184+i}',
                  f'v_accvgpr_write_b32 a{240+2*i}, v192', f'v_accvgpr_write_b32 a{241+2*i}, v193')
        e.wait(tWk[7], tWv[7]); e('s_barrier')
        stamp('Wready')
        tW = {}
        def rdKV(n):
            ks, t = n >> 1, n & 1
            r, o = ldsaddr((R1, R2)[t] + ks * 1024)
            tW[n] = e(f'ds_read_b128 {v(RING + 4 * (n % 6), 4)}, {r} offset:{o}')
        for n in range(5): rdKV(n)
        tSt = None
        for n in range(64):
            ks, t = n >> 1, n & 1
            if n + 5 < 64: rdKV(n + 5)
            e.wait(tW[n], tX[ks])
            acc = v((aK, aV)[t], 16)
            e(f'{MF} {acc}, {v(RING + 4 * (n % 6), 4)}, {v(XB + 4 * ks, 4)}, {acc if ks else 0}')
            if t == 0:
                xs.pop(1)
                if ks == 8:
                    e(f'buffer_load_dwordx4 v[220:223], v217, {SRD}, s43 offen')
                    tSt = e(f'buffer_load_dwordx4 v[224:227], v217, {SRD}, s43 offen offset:16')
            if n == 48:
                e.wait(tSt)
                stats_rstd(e, 220, 228)
                e(f'v_mul_f32 v229, {LOG2E}, v228')
        e('s_barrier')
        stamp('kvgemm')
        tWq = {}
        bg = Stream(); bg.q = w1_dma(2, R1, tWq)
        if L == 0:
            e(f's_mul_i32 s45, s23, {64 * KB}', 's_lshl_b32 s31, s3, 14', 's_add_u32 s45, s45, s31', f's_add_u32 s45, s45, {W2P}')
            bg.q += frag_loads(lambda i: a(4 * i, 4), 16, 's45', bgW2t)
            e(f's_mul_i32 s46, s19, {96 * KB}', 's_add_u32 s46, s46, s28', f's_add_u32 s46, s46, {W3P}')
            w3q = dma_loads(24, 's46', 's28', bgW3t)
        e('v_and_b32 v218, 0x1f0, v0', 'v_lshlrev_b32 v218, 1, v218', 'v_bfe_u32 v6, v0, 6, 1', 'v_lshl_add_u32 v218, v6, 4, v218',
          'v_lshrrev_b32 v6, 9, v0', 'v_lshl_add_u32 v218, v6, 12, v218', f's_add_u32 s31, s28, {R2}', 'v_add_u32 v218, s31, v218', 'v_xor_b32 v219, 16, v218')
        def softmax(acc, normalize_pos, hook):
            ops = []
            o = ops.append
            mx, mn = 230, 231
            o(f'v_max3_f32 v{mx}, v{acc}, v{acc+1}, v{acc+2}'); o(f'v_min3_f32 v{mn}, v{acc}, v{acc+1}, v{acc+2}')
            for i in range(3, 15, 2):
                o(f'v_max3_f32 v{mx}, v{mx}, v{acc+i}, v{acc+i+1}'); o(f'v_min3_f32 v{mn}, v{mn}, v{acc+i}, v{acc+i+1}')
            o(f'v_max_f32 v{mx}, v{mx}, v{acc+15}'); o(f'v_min_f32 v{mn}, v{mn}, v{acc+15}')
            o(f'v_pk_mul_f32 v[230:231], v[230:231], v[228:229] op_sel:[0,1] op_sel_hi:[1,1]')
            for i in range(0, 16, 2):
                o(f'v_pk_fma_f32 {v(EB+i,2)}, {v(acc+i,2)}, v[228:229], v[230:231] op_sel:[0,1,0] op_sel_hi:[1,1,0] neg_lo:[0,0,1] neg_hi:[0,0,1]')
            for i in range(0, 16, 2):
                o(f'v_pk_fma_f32 {v(EB+16+i,2)}, {v(acc+i,2)}, v[228:229], v[230:231] op_sel:[0,1,1] op_sel_hi:[1,1,1] neg_lo:[1,0,0] neg_hi:[1,0,0]')
            for i in range(32): o(f'v_exp_f32 v{EB+i}, v{EB+i}')
            o(f'v_pk_add_f32 v[220:221], {v(EB,2)}, {v(EB+2,2)}'); o(f'v_pk_add_f32 v[222:223], {v(EB+16,2)}, {v(EB+18,2)}')
            for i in range(4, 16, 2):
                o(f'v_pk_add_f32 v[220:221], v[220:221], {v(EB+i,2)}'); o(f'v_pk_add_f32 v[222:223], v[222:223], {v(EB+16+i,2)}')
            o('v_add_f32 v220, v220, v221'); o('v_add_f32 v222, v222, v223')
            if normalize_pos:
                o('v_rcp_f32 v224, v220'); o('v_rcp_f32 v225, v222')
                for i in range(0, 16, 2): o(f'v_pk_mul_f32 {v(EB+i,2)}, {v(EB+i,2)}, v[224:225] op_sel:[0,0] op_sel_hi:[1,0]')
            else:
                o('v_rcp_f32 v225, v222')
            for i in range(8): o(f'v_cvt_pk_bf16_f32 v{EB+i}, v{EB+2*i}, v{EB+2*i+1}')
            if normalize_pos:
                o(f'ds_write_b128 v218, {v(EB,4)}'); o(f'ds_write_b128 v219, {v(EB+4,4)}')
            else: o('v_mul_f32 v225, v225, v220')
            for i in range(0, 16, 2): o(f'v_pk_mul_f32 {v(EB+16+i,2)}, {v(EB+16+i,2)}, v[224:225] op_sel:[0,1] op_sel_hi:[1,1]')
            for i in range(8): o(f'v_cvt_pk_bf16_f32 v{EB+16+i}, v{EB+16+2*i}, v{EB+16+2*i+1}')
            if normalize_pos:
                o(f'ds_write_b128 v218, {v(EB+16,4)} offset:8192'); o(f'ds_write_b128 v219, {v(EB+20,4)} offset:8192')
            for i, x in enumerate(ops):
                e(x); hook(i)
        for i in range(0, 16, 2): e(f'v_pk_mul_f32 {v(aV+i,2)}, {v(aV+i,2)}, v[228:229] op_sel:[0,0] op_sel_hi:[1,0]')
        bg.pop(1)
        for i in range(8): e(f'v_cvt_pk_bf16_f32 v{aV+i}, v{aV+2*i}, v{aV+2*i+1}')
        e(f'ds_write_b128 v218, {v(aV,4)} offset:16384', f'ds_write_b128 v219, {v(aV+4,4)} offset:16384')
        softmax(aK, True, lambda i: bg.pop(1) if i % 12 == 0 else None)
        e('v_lshrrev_b32 v6, 1, v0', 'v_bfe_u32 v216, v0, 8, 1', 'v_lshlrev_b32 v216, 4, v216', 'v_xor_b32 v6, v6, v216',
          's_lshr_b32 s30, s3, 1', 's_and_b32 s31, s3, 1', 's_lshl_b32 s30, s30, 12', 's_lshl_b32 s31, s31, 13',
          f's_add_u32 s30, s30, {R2}', 's_add_u32 s31, s31, s30', 's_add_u32 s30, s30, 16384')
        e('s_waitcnt lgkmcnt(0)', 'v_add_u32 v218, s31, v6', 'v_add_u32 v219, s30, v6', 's_barrier')
        stamp('smk')
        tt = []
        for b in range(4):
            for rd in range(2): e(f'ds_read_b64_tr_b16 {v(136+8*b+2*rd,2)}, v218 offset:{b*1024+rd*512}')
            for rd in range(2): t = e(f'ds_read_b64_tr_b16 {v(140+8*b+2*rd,2)}, v219 offset:{b*1024+rd*512}')
            tt.append(t)
            if b == 1:
                for i in range(4): e(f'v_mov_b32 v{184+i}, 0x3f803f80')
        e('s_lshl_b32 s30, s21, 2', 's_add_u32 s30, s30, s3', 's_lshl_b32 s31, s18, 1', 's_add_u32 s31, s31, s20',
          's_lshl_b32 s47, s30, 14', f's_add_u32 s47, s47, {KVP + L * MB}', 's_lshl_b32 s48, s31, 10', 's_add_u32 s48, s48, s47',
          's_lshl_b32 s50, s30, 10', f's_add_u32 s50, s50, {ZP + L * 64 * KB}', 's_lshl_b32 s49, s31, 6', 's_add_u32 s49, s49, s50',
          'v_lshrrev_b32 v6, 4, v0', 's_mov_b32 s30, 0x00010001', 's_mov_b32 s31, 0x00010001')
        for b in range(4):
            e.wait(tt[b])
            e(f'{MF16} v[188:191], {v(136+8*b,4)}, {v(140+8*b,4)}, {"v[188:191]" if b else 0}')
            e(f'{MF16} v[192:195], {v(136+8*b,4)}, v[184:187], {"v[192:195]" if b else 0}')
        e(f'buffer_store_dwordx4 v[188:191], v0, {SRD}, s48 offen sc1')
        e('s_mov_b64 exec, s[30:31]')
        e(f'buffer_store_dwordx4 v[192:195], v6, {SRD}, s49 offen sc1')
        e('s_mov_b64 exec, -1')
        stamp('kvpub')
        while len(tWq) < 8: bg.pop(1)
        e.wait(tWq[7]); e('s_barrier')
        if L == 0: bg.q += w3q
        tW = {}
        def rdQ(n):
            r, o = ldsaddr(R1 + n * 1024)
            tW[n] = e(f'ds_read_b128 {v(RING + 4 * (n % 6), 4)}, {r} offset:{o}')
        for n in range(5): rdQ(n)
        for n in range(32):
            if n + 5 < 32: rdQ(n + 5)
            e.wait(tW[n])
            e(f'{MF} {v(aQ,16)}, {v(RING + 4 * (n % 6), 4)}, {v(XB + 4 * n, 4)}, {v(aQ,16) if n else 0}')
            if n % 2 == 0: bg.pop(1)
        stamp('qgemm')
        tG = {}
        e('v_and_b32 v216, 0xf0, v0', 'v_lshlrev_b32 v216, 2, v216', 'v_lshrrev_b32 v6, 8, v0', 'v_lshl_add_u32 v216, v6, 4, v216', 's_mov_b32 s51, s47')
        gs = Stream(); gs.q = frag_loads(lambda i: v(8 + 4 * i, 4), 16, 's51', tG, sc='sc1')
        def gz(): tG['z'] = e(f'buffer_load_dwordx4 v[72:75], v216, {SRD}, s50 offen sc1')
        gs.q.append(gz)
        if L == 0:
            def gh():
                e('s_lshl_b32 s52, s18, 7', f's_add_u32 s52, s52, {HELLO}')
                tG['h'] = poll_issue('v3', 's52')
            gs.q.append(gh)
        for i in range(0, 32, 2): e(f'v_mov_b64 {v(80+i,2)}, 0')
        softmax(aQ, False, lambda i: gs.pop(1) if i >= cfg.gather_at and (i - cfg.gather_at) % 5 == 0 else None)
        gs.flush()
        e(f'v_mul_f32 v226, 0x358637bd, v220')
        KVS = R2 + 24 * KB; ZS = KVS + 2048
        e('v_and_b32 v218, 0xf0, v0', 'v_lshlrev_b32 v218, 1, v218', 'v_lshrrev_b32 v219, 8, v0', 'v_lshlrev_b32 v219, 3, v219', 'v_add_u32 v218, v218, v219',
          's_lshl_b32 s30, s3, 9', f's_add_u32 s30, s30, {KVS}', 'v_add_u32 v218, s30, v218',
          's_lshl_b32 s30, s3, 5', f's_add_u32 s30, s30, {ZS}', 'v_add_u32 v219, s30, v219',
          'v_bfe_u32 v6, v0, 7, 2', 'v_bfe_u32 v217, v0, 4, 2', 'v_lshl_add_u32 v6, v6, 2, v217', 'v_lshlrev_b32 v6, 5, v6',
          'v_lshrrev_b32 v217, 9, v0', 'v_lshl_add_u32 v6, v217, 10, v6', f'v_add_u32 v6, {KVS}, v6',
          'v_lshlrev_b32 v217, 6, v217', f'v_add_u32 v217, {ZS}, v217')
        stamp('smq')
        lre, lchk, lgo = e.label('Lre'), e.label('Lchk'), e.label('Lgo')
        e('s_mov_b32 s61, 0', f'{lre}:')
        e.wait(tG[1])
        e('v_pk_add_f32 v[112:113], v[8:9], v[12:13]', 'v_pk_add_f32 v[114:115], v[10:11], v[14:15]')
        for p in range(2, 16):
            e.wait(tG[p])
            e(f'v_pk_add_f32 v[112:113], v[112:113], {v(8+4*p,2)}', f'v_pk_add_f32 v[114:115], v[114:115], {v(10+4*p,2)}')
        e.wait(tG['z'])
        for j, sh in enumerate((8, 4, 2, 1)):
            for r in range(4):
                src = 72 + r if j == 0 else 116 + r
                e(f'v_add_f32 v{116+r}, v{src}, v{src} row_ror:{sh} row_mask:0xf bank_mask:0xf')
        e('v_pk_add_f32 v[120:121], v[112:113], v[114:115]', 'v_pk_add_f32 v[122:123], v[116:117], v[118:119]',
          'v_cvt_pk_bf16_f32 v112, v112, v113', 'v_pk_add_f32 v[120:121], v[120:121], v[122:123]', 'v_cvt_pk_bf16_f32 v113, v114, v115',
          'v_cmp_u_f32 vcc, v120, v121', 'v_cvt_pk_bf16_f32 v116, v116, v117', 'v_cvt_pk_bf16_f32 v117, v118, v119',
          f's_cbranch_vccnz {lchk}', f'{lgo}:')
        c = [f'{lchk}:', 'v_max3_u32 v120, v8, v9, v10']
        for i in range(11, 75, 2): c.append(f'v_max3_u32 v120, v120, v{i}, v{i+1}')
        c += ['v_max_u32 v120, v120, v75', 'v_cmp_eq_u32 vcc, -1, v120', 's_add_u32 s61, s61, 1', f's_cbranch_vccz {lgo}',
              f's_cmp_ge_u32 s61, {cfg.tmo}', f's_cbranch_scc1 {name}_fail', 's_mov_b32 s51, s47']
        for i in range(16):
            if i and i % 4 == 0: c.append('s_add_u32 s51, s51, 4096')
            c.append(f'buffer_load_dwordx4 {v(8+4*i,4)}, v0, {SRD}, s51 offen offset:{(i%4)*1024} sc1')
        c += [f'buffer_load_dwordx4 v[72:75], v216, {SRD}, s50 offen sc1', 's_waitcnt vmcnt(0)', f's_branch {lre}']
        cold.append('\n'.join(c))
        e('ds_write_b64 v218, v[112:113]', 'ds_write_b64 v219, v[116:117]')
        if L == 0:
            poll_check(tG['h'], 'v3', 's52', None)
            e('v_cmp_ne_u32 vcc, s29, v4', 's_nop 1', 's_cmp_eq_u64 vcc, 0', 's_cselect_b32 s24, 1, 0')
        e('s_mov_b32 s30, 0x0f0f0f0f', 's_mov_b32 s31, 0xf0f0f0f0', 's_waitcnt lgkmcnt(0)', 's_barrier')
        stamp('gath')
        e('s_mov_b64 exec, s[30:31]')
        tk, tz = [], []
        for i in range(4):
            tz.append(e(f'ds_read_b128 {v(96+4*i,4)}, v217 offset:{(i>>1)*32+(i&1)*16}'))
            tk.append(e(f'ds_read_b128 {v(80+4*i,4)}, v6 offset:{(i>>1)*512+(i&1)*16}'))
        e('s_mov_b64 exec, -1')
        e('s_lshl_b32 s42, s25, 15', 's_lshl_b32 s31, s21, 11', 's_add_u32 s42, s42, s31', f's_add_u32 s42, s42, {OF + L * 2 * MB}')
        e('s_lshl_b32 s43, s25, 7', 's_lshl_b32 s31, s21, 2', 's_add_u32 s43, s43, s31', f's_add_u32 s43, s43, {FL + (4 * L + FL_O) * 8192}')
        PQ = (EB, EB + 4, EB + 16, EB + 20)
        for i in range(4):
            e.wait(tz[i]); e(f'{MF} v[152:167], {v(96+4*i,4)}, {v(PQ[i],4)}, {"v[152:167]" if i else 0}')
        for i in range(4):
            e.wait(tk[i]); e(f'{MF} v[136:151], {v(80+4*i,4)}, {v(PQ[i],4)}, {"v[136:151]" if i else 0}')
        def p24_addrs():
            e('v_lshrrev_b32 v6, 9, v0', 'v_and_b32 v248, 0x1f0, v0', 'v_lshlrev_b32 v249, 7, v6', 'v_xor_b32 v248, v248, v249', 'v_lshl_add_u32 v248, v6, 10, v248',
              's_lshl_b32 s30, s3, 13', 'v_add_u32 v248, s30, v248', f'v_add_u32 v248, {R1}, v248',
              'v_lshl_add_u32 v252, v6, 9, v3',
              'v_and_b32 v250, 0x70, v0', 's_lshl_b32 s30, s3, 7', 'v_add_u32 v250, s30, v250',
              'v_lshlrev_b32 v251, 1, v250', 'v_lshl_add_u32 v251, v6, 10, v251',
              'v_and_b32 v249, 0x80, v0', 'v_xor_b32 v249, v249, v250', 'v_lshrrev_b32 v6, 7, v0', 'v_lshl_add_u32 v249, v6, 10, v249',
              f'v_add_u32 v249, {R1}, v249',
              'v_lshl_add_u32 v250, v6, 9, v250')
        p24_addrs()
        e('v_add_f32 v152, v152, v226', 'v_rcp_f32 v152, v152')
        for u in range(2):
            for i in range(0, 8, 2): e(f'v_pk_mul_f32 {v(136+8*u+i,2)}, {v(136+8*u+i,2)}, v[152:153] op_sel:[0,0] op_sel_hi:[1,0]')
            for i in range(4): e(f'v_cvt_pk_bf16_f32 v{136+8*u+i}, v{136+8*u+2*i}, v{137+8*u+2*i}')
            t = e(f'buffer_store_dwordx4 {v(136+8*u,4)}, v0, {SRD}, s42 offen offset:{u*1024}')
        e('s_lshl_b32 s44, s26, 7', f's_add_u32 s44, s44, {FL + (4 * L + FL_O) * 8192}', 's_lshl_b32 s31, s3, 2', 's_lshl_b32 s54, 15, s31', 's_mov_b32 s55, s54')
        e('s_lshl_b32 s45, s26, 15', 's_lshl_b32 s31, s3, 13', 's_add_u32 s45, s45, s31', f's_add_u32 s45, s45, {OF + L * 2 * MB}', f's_add_u32 s53, s45, {128 * KB}')
        e.wait(t); stamp('odrain')
        flag_store('s43')
        t = poll_issue('v252', 's44'); poll_check(t, 'v252', 's44', 's[54:55]')
        stamp('opolled')
        tA, tB = {}, {}
        xs = Stream(); xs.q = frag_loads(lambda i: v(8 + 4 * i, 4), 8, 's45', tA) + frag_loads(lambda i: v(40 + 4 * i, 4), 8, 's53', tB)
        xs.pop(8)
        for i in range(16): e(f'v_accvgpr_read_b32 v{104+i}, a{240+i}')
        if L == 0: e.wait(bgW2t[15])
        A2 = ((136, 152), (168, 184))
        def red_write(blk_acc, off):
            q = []
            for ft in range(2):
                for a_ in range(4):
                    q.append(f'ds_write_b128 v248, {v(blk_acc[ft] + 4 * a_, 4)} offset:{off + (8 * ft + 4 * (a_ >> 1) + (a_ & 1)) * 512}')
            return q
        def red_read(dst, off):
            return [e(f'ds_read_b128 {v(dst + 8 * pw + 4 * ee, 4)}, v249 offset:{off + pw * 8192 + ee * 512}') for pw in range(4) for ee in range(2)]
        wq = red_write(A2[0], 0)
        for blk in range(2):
            for ks in range(8):
                e.wait((tA, tB)[blk][ks])
                for ft in range(2):
                    acc = v(A2[blk][ft], 16)
                    e(f'{MF} {acc}, {a(8 * ks + 4 * ft, 4)}, {v(8 + 32 * blk + 4 * ks, 4)}, {acc if ks else 0}')
                    if blk == 1 and ks >= 3 and wq: e(wq.pop(0))
                xs.pop(1)
        e('s_waitcnt lgkmcnt(0)', 's_barrier')
        stamp('p2gemm')
        def finalize(tr, T, res, scale):
            e.wait(tr[3])
            for i in range(0, 8, 2): e(f'v_pk_add_f32 {v(T+i,2)}, {v(T+i,2)}, {v(T+8+i,2)}')
            e.wait(tr[7])
            for i in range(0, 8, 2): e(f'v_pk_add_f32 {v(T+16+i,2)}, {v(T+16+i,2)}, {v(T+24+i,2)}')
            for i in range(0, 8, 2): e(f'v_pk_add_f32 {v(T+i,2)}, {v(T+i,2)}, {v(T+16+i,2)}')
            for i in range(0, 8, 2):
                if scale is None: e(f'v_pk_add_f32 {v(res+i,2)}, {v(res+i,2)}, {v(T+i,2)}')
                else: e(f'v_pk_fma_f32 {v(res+i,2)}, {v(T+i,2)}, v[254:255], {v(res+i,2)} op_sel:[0,{scale},0] op_sel_hi:[1,{scale},1]')
            for i in range(4): e(f'v_cvt_pk_bf16_f32 v{T+i}, v{res+2*i}, v{res+2*i+1}')
        def stats_store(res, T, sreg):
            e(f'v_pk_add_f32 {v(T,2)}, {v(res,2)}, {v(res+2,2)}', f'v_pk_mul_f32 {v(T+2,2)}, {v(res,2)}, {v(res,2)}',
              f'v_pk_add_f32 {v(T,2)}, {v(T,2)}, {v(res+4,2)}', f'v_pk_fma_f32 {v(T+2,2)}, {v(res+2,2)}, {v(res+2,2)}, {v(T+2,2)}',
              f'v_pk_add_f32 {v(T,2)}, {v(T,2)}, {v(res+6,2)}', f'v_pk_fma_f32 {v(T+2,2)}, {v(res+4,2)}, {v(res+4,2)}, {v(T+2,2)}',
              f'v_add_f32 v{T}, v{T}, v{T+1}', f'v_pk_fma_f32 {v(T+2,2)}, {v(res+6,2)}, {v(res+6,2)}, {v(T+2,2)}',
              f'v_add_f32 v{T+2}, v{T+2}, v{T+3}',
              f'v_permlane32_swap_b32 v{T}, v{T+2}', f'v_add_f32 v{T}, v{T}, v{T+2}',
              f'v_add_f32 v{T}, v{T}, v{T} row_ror:8 row_mask:0xf bank_mask:0xf', f'v_mov_b32 v{T+1}, v{T}',
              f'v_permlane16_swap_b32 v{T}, v{T+1}', f'v_add_f32 v{T}, v{T}, v{T+1}',
              's_mov_b32 exec_lo, 0xff', 's_mov_b32 exec_hi, 0xff')
            t = e(f'buffer_store_dword v{T}, v251, {SRD}, {sreg} offen')
            e('s_mov_b64 exec, -1')
            return t
        def x_soffs(buf, kind):
            e('s_lshl_b32 s42, s26, 15', 's_lshl_b32 s31, s23, 12', 's_add_u32 s42, s42, s31', f's_add_u32 s42, s42, {XF + buf * 2 * MB}',
              's_lshl_b32 s43, s26, 7', 's_lshl_b32 s31, s23, 4', 's_add_u32 s43, s43, s31', 's_lshl_b32 s31, s3, 2', 's_add_u32 s43, s43, s31', f's_add_u32 s43, s43, {FL + kind * 8192}',
              's_lshl_b32 s45, s26, 11', 's_lshl_b32 s31, s23, 2', 's_add_u32 s45, s45, s31', f's_add_u32 s45, s45, {ST + buf * ST_L}')
        tr = red_read(72, 0)
        x_soffs(2 * L + 1, 4 * L + FL_X1)
        for x in red_write(A2[1], 32 * KB): e(x)
        finalize(tr, 72, 104, None)
        tXA = e(f'buffer_store_dwordx4 v[72:75], v250, {SRD}, s42 offen')
        if L == 0:
            bg.flush(); e.wait(bgW3t[23])
        e('s_waitcnt lgkmcnt(0)', 's_barrier')
        tr = red_read(8, 32 * KB)
        stats_store(104, 80, 's45')
        e.wait(tXA); flag_store('s43')
        stamp('x1Aflag')
        finalize(tr, 8, 112, None)
        e(f's_add_u32 s42, s42, {128 * KB}', 's_add_u32 s45, s45, 8192', 's_add_u32 s43, s43, 512')
        e(f'buffer_store_dwordx4 v[8:11], v250, {SRD}, s42 offen')
        stats_store(112, 84, 's45')
        e('s_lshl_b32 s44, s27, 7', f's_add_u32 s44, s44, {FL + (4 * L + FL_X1) * 8192}')
        tP = poll_issue('v3', 's44')
        for i in range(16): e(f'v_accvgpr_write_b32 a{240+i}, v{104+i}')
        e('s_lshl_b32 s42, s27, 15', f's_add_u32 s42, s42, {XF + (2 * L + 1) * 2 * MB}', f's_add_u32 s53, s42, {128 * KB}')
        e.wait(tP); flag_store('s43')
        aA, aB = 136, 184
        def p4_params():
            e(f's_mul_i32 s56, s26, {HF_B}', f's_mul_i32 s31, s3, {22 * KB}', 's_add_u32 s56, s56, s31', f's_add_u32 s56, s56, {HF + L * HF_L}', f's_add_u32 s57, s56, {4 * HF_B}',
              's_lshl_b32 s58, s26, 7', f's_add_u32 s58, s58, {FL + (4 * L + FL_X1) * 8192}',
              's_mul_i32 s31, s3, 7', 's_lshl_b32 s54, 0xff, s31', 's_cmp_eq_u32 s3, 3', 's_cselect_b32 s54, 0x1fc00000, s54', 's_mov_b32 s55, -1',
              'v_lshrrev_b32 v6, 9, v0', 'v_mul_u32_u24 v6, 7680, v6', 'v_sub_u32 v6, v3, v6', 'v_add_u32 v6, 8192, v6',
              's_lshl_b32 s59, s26, 11', f's_add_u32 s59, s59, {ST + (2 * L + 1) * ST_L}')
        hslot = lambda blk, i: (8 + 4 * i) if blk == 0 else (96 + 4 * i if i < 10 else 184 + 4 * (i - 10))
        tHA, tHB = {}, {}
        bg = Stream()
        tWk, tWv = {}, {}
        def l0_bg():
            e(f's_mul_i32 s46, s23, {176 * KB}', f's_mul_i32 s31, s3, {44 * KB}', 's_add_u32 s46, s46, s31', f's_add_u32 s46, s46, {W4P}')
            return frag_loads(lambda i: a(64 + 4 * i, 4), 44, 's46', bgW4t) + w1_dma(0, R1, tWk)
        lskip, lp4 = e.label('Lskip3'), e.label('Lp4')
        vm_save = e.vm
        e('s_cmp_ge_u32 s19, 29', f's_cbranch_scc1 {lskip}')
        poll_check(tP, 'v3', 's44', None)
        stamp('x1polled')
        tX = {}; tXB = {}
        xs = Stream(); xs.q = frag_loads(lambda i: v(XB + 4 * i, 4), 32, 's42', tX)
        xsB = frag_loads(lambda i: v(XB + 4 * i, 4), 32, 's53', tXB)
        xs.pop(cfg.D3)
        if L == 0: bg.q = l0_bg()
        p4_params()
        e(f's_mul_i32 s47, s27, {HF_B}', f's_mul_i32 s31, s19, {3 * KB}', 's_add_u32 s47, s47, s31', f's_add_u32 s47, s47, {HF + L * HF_L}',
          's_lshl_b32 s48, s27, 7', 's_lshl_b32 s31, s19, 2', 's_add_u32 s48, s48, s31', f's_add_u32 s48, s48, {FL + (4 * L + FL_H) * 8192}',
          's_add_u32 s44, s44, 512')
        tW = {}
        def rd3(n):
            r, o = ldsaddr((n % 96) * 1024)
            tW[n] = e(f'ds_read_b128 {v(RING + 4 * (n % 6), 4)}, {r} offset:{o}')
        def h_epi(acc):
            q = []
            for t in range(3):
                b = acc + 16 * t
                for i in range(8): q.append(f'v_max_f32 v{b+i}, 0, v{b+i}')
                for i in range(0, 8, 2): q.append(f'v_pk_mul_f32 {v(b+i,2)}, {v(b+i,2)}, {v(b+8+i,2)}')
                for i in range(4): q.append(f'v_cvt_pk_bf16_f32 v{b+i}, v{b+2*i}, v{b+2*i+1}')
                q.append(f'buffer_store_dwordx4 {v(b,4)}, v0, {SRD}, s47 offen offset:{t*1024}')
            return q
        for n in range(5): rd3(n)
        epi = h_epi(aA); tH = None; hs = Stream()
        KB_POLL = 32 - cfg.D3 - 6
        for n in range(192):
            blk, ks, t = n // 96, (n % 96) // 3, n % 3
            if n + 5 < 192: rd3(n + 5)
            e.wait(tW[n], (tX, tXB)[blk][ks])
            acc = v((aA, aB)[blk] + 16 * t, 16)
            e(f'{MF} {acc}, {v(RING + 4 * (n % 6), 4)}, {v(XB + 4 * ks, 4)}, {acc if ks else 0}')
            if blk == 0:
                if t == 0 and ks == KB_POLL: tPB = poll_issue('v3', 's44')
                if t == 2 and ks == 32 - cfg.D3 - 1:
                    poll_check(tPB, 'v3', 's44', None); xs.q += xsB
            else:
                if ks >= 1:
                    for _ in range(4):
                        if epi: tH = e(epi.pop(0)) or tH
                if ks == 11 and t == 0:
                    e.wait(tH); flag_store('s48')
                if ks == 15 and t == 0: tPH = poll_issue('v6', 's58')
                if ks == 21 and t == 0:
                    poll_check(tPH, 'v6', 's58', 's[54:55]')
                    hs.q = frag_loads(lambda i: v(hslot(0, i), 4), 22, 's56', tHA)
            if t == 2:
                if xs.q: xs.pop(1)
                else: hs.pop(1)
            if t == 0 and (ks & 1):
                if blk == 1 and ks > 21: hs.pop(1)
                else: bg.pop(1)
            if t == 1 and L == 0 and not (blk == 1 and ks > 21) and ks % 3 == 0: bg.pop(1)
        stamp('p3gemm')
        e(f's_add_u32 s47, s47, {4 * HF_B}', 's_add_u32 s48, s48, 512')
        for i, x in enumerate(h_epi(aB)):
            tH = e(x) or tH
            if i % 8 == 7: hs.pop(1)
        hs.flush(); bg.flush()
        e.wait(tH); flag_store('s48')
        e(f'{lp4}:')
        e2 = e; sv = (e.ins, e.vm, e.lg, e.vm_done, e.lg_done)
        e.ins = []
        e(f'{lskip}:')
        p4_params()
        if L == 0:
            keep = (dict(bgW4t), dict(tWk))
            for f in l0_bg(): f()
            bgW4t.update(keep[0]); tWk.update(keep[1])
        t = poll_issue('v6', 's58'); poll_check(t, 'v6', 's58', 's[54:55]')
        for f in frag_loads(lambda i: v(hslot(0, i), 4), 22, 's56', {}): f()
        e('s_waitcnt vmcnt(0)', f's_branch {lp4}')
        cold.append(e.text())
        e.ins, e.vm, e.lg, e.vm_done, e.lg_done = sv
        stamp('hBflag')
        A4 = ((136, 152), (168, 232))
        p24_addrs()
        e(f'v_add_u32 v248, {32 * KB}, v248', f'v_add_u32 v249, {32 * KB}, v249')
        e('s_add_u32 s31, s59, 8192')
        e(f'buffer_load_dwordx4 v[96:99], v251, {SRD}, s59 offen', f'buffer_load_dwordx4 v[100:103], v251, {SRD}, s59 offen offset:16',
          f'buffer_load_dwordx4 v[104:107], v251, {SRD}, s31 offen')
        tS4 = e(f'buffer_load_dwordx4 v[108:111], v251, {SRD}, s31 offen offset:16')
        e(f's_add_u32 s58, s58, {8192 + 512}', 's_mov_b32 s55, 0')
        if L == 0: e.wait(bgW4t[43])
        hs = Stream()
        def gemm4(blk, toks, hook):
            lsk = e.label('Lk3')
            for ks in range(22):
                if ks == 20: e('s_cmp_eq_u32 s3, 3', f's_cbranch_scc1 {lsk}')
                e.wait(toks[ks])
                for ft in range(2):
                    acc = v(A4[blk][ft], 16)
                    e(f'{MF} {acc}, {a(64 + 8 * ks + 4 * ft, 4)}, {v(hslot(blk, ks), 4)}, {acc if ks else 0}')
                if ks < 20: hook(ks)
            e(f'{lsk}:')
        P = {}
        def hookA(ks):
            if ks == 5: P['t'] = poll_issue('v3', 's58')
            if ks == 6:
                e.wait(tS4); stats_rstd(e, 96, 254, sq=True)
            if ks == 8: stats_rstd(e, 104, 255, sq=True)
            if ks == 11:
                poll_check(P['t'], 'v3', 's58', 's[54:55]')
                hs.q = frag_loads(lambda i: v(hslot(1, i), 4), 22, 's57', tHB)
            if ks >= 11: hs.pop(1)
        gemm4(0, tHA, hookA)
        e('s_barrier')
        for x in red_write(A4[0], 0):
            e(x)
        hs.pop(2)
        for i in range(16): e(f'v_accvgpr_read_b32 v{72+i}, a{240+i}')
        e('s_waitcnt lgkmcnt(0)', 's_barrier')
        stamp('p4A')
        tr = red_read(8, 0)
        hs.pop(2)
        if not last: x_soffs(2, FL_X2)
        else: addr_rowmajor('v250'); soff_rowmajor('s42')
        OS = SRD if not last else 's[12:15]'
        finalize(tr, 8, 72, 0)
        e('s_barrier')
        t = e(f'buffer_store_dwordx4 v[8:11], v250, {OS}, s42 offen')
        if not last: t = stats_store(72, 16, 's45')
        def hookB(ks):
            hs.pop(1)
            if ks == 6 and not last:
                e.wait(t); flag_store('s43')
        gemm4(1, tHB, hookB)
        assert not hs.q
        stamp('p4Bgemm')
        for x in red_write(A4[1], 0): e(x)
        e(f's_add_u32 s42, s42, {128 * KB}', 's_add_u32 s45, s45, 8192', 's_add_u32 s43, s43, 512')
        e('s_waitcnt lgkmcnt(0)', 's_barrier')
        tr = red_read(8, 0)
        finalize(tr, 8, 80, 1)
        t = e(f'buffer_store_dwordx4 v[8:11], v250, {OS}, s42 offen')
        if not last:
            t = stats_store(80, 16, 's45')
            for i in range(16): e(f'v_accvgpr_write_b32 a{240+i}, v{72+i}')
            e('s_barrier')
            e.wait(t); flag_store('s43')
            for f in w1_dma(1, R2, tWv): f()
        stamp('end')
    if cfg.stamps:
        e('s_lshl_b32 s30, s2, 2', 's_add_u32 s30, s30, s3', 's_lshl_b32 s30, s30, 8', f's_add_u32 s30, s30, {STAMP}', 'v_lshrrev_b32 v6, 2, v0',
          f'buffer_store_dword v7, v6, {SRD}, s30 offen')
    e(f'{name}_end:', 's_endpgm')
    for c in cold: e(c)
    e(f"""{name}_fail:
    v_mov_b32 v4, 0
    v_mov_b32 v6, 0xdead
    global_store_dword v4, v6, s[16:17]
    s_endpgm""")
    e.stamp_names = st['names']
    return e
def stats_rstd(e, src, dst, sq=False):
    e(f'v_pk_add_f32 {v(src,2)}, {v(src,2)}, {v(src+2,2)}', f'v_pk_add_f32 {v(src+4,2)}, {v(src+4,2)}, {v(src+6,2)}',
      f'v_pk_add_f32 {v(src,2)}, {v(src,2)}, {v(src+4,2)}', f'v_add_f32 v{src}, v{src}, v{src+1}',
      f'v_mul_f32 v{src}, 0x3b000000, v{src}', f'v_mov_b32 v{src+1}, v{src}',
      f'v_permlane32_swap_b32 v{src}, v{src+1}',
      f'v_fma_f32 v{src}, -v{src}, v{src}, v{src+1}', f'v_max_f32 v{src}, 0, v{src}', f'v_add_f32 v{src}, 0x3727c5ac, v{src}',
      f'v_rcp_f32 v{dst}, v{src}' if sq else f'v_rsq_f32 v{dst}, v{src}')
```

```python
KB = 1024; MB = 1024 * 1024
W1P = 0
W2P = 2 * MB
W3P = 3 * MB
W4P = 6 * MB
XF  = 8 * MB
OF  = 16 * MB
HF  = 20 * MB
HF_L = 6 * MB; HF_B = 96 * KB
ST  = 32 * MB
ST_L = 128 * KB
KVP = 33 * MB
ZP  = 35 * MB
FL  = 36 * MB
HELLO = FL + 64 * KB
STAMP = 40 * MB
WS_BYTES = 256 * MB
FL_O, FL_X1, FL_H, FL_X2 = 0, 1, 2, 3
def pi(m):
    a, h, b = m >> 3, (m >> 2) & 1, m & 3
    return 16 * (a >> 1) + 8 * h + 4 * (a & 1) + b
def sigma(m):
    a, h, b = m >> 3, (m >> 2) & 1, m & 3
    return 16 * h + 4 * a + b
KNAME = 'interleave_layers__linear_kernel_hedgehog__glu_gated_reglu__prompt'
```

```python
import sys, json
from agen import head, desc, TOP
from layout import *
import gen_k0, gen_k1
def build(out, **kw):
    cfg = gen_k1.Cfg()
    for k, x in kw.items(): setattr(cfg, k, x)
    e0 = gen_k0.gen_k0(); e1 = gen_k1.gen_k1(cfg)
    ref = open('cdna_kernels/' + KNAME + '.s.ref').read().split('\n')
    hdr = '\n'.join(l for l in ref[:12]) + '\n'
    txt = (hdr + f'; @launch kernel=prep_kernel grid=({gen_k0.K0_GRID},1,1) block=(256,1,1) lds=1024\n'
           + f'; @launch kernel={KNAME}_kernel grid=(256,1,1) block=(256,1,1) lds=163840\n'
           + TOP + head('prep_kernel') + e0.text() + head(KNAME + '_kernel') + e1.text()
           + desc('prep_kernel', 128, 64, 128) + desc(KNAME + '_kernel', 512, 96, 256))
    open(out, 'w').write(txt)
    json.dump(e1.stamp_names, open(out + '.stamps.json', 'w'))
    print(out, 'instrs', len(e1.ins), 'nops', e1.nops)
if __name__ == '__main__':
    build('v1.s'); build('v1s.s', stamps=True)
```

```python
KB = 1024; MB = 1024 * 1024
W1P = 0
W2P = 3 * MB // 2
W3P = 2 * MB
W4P = 5 * MB
KVP = 13 * MB // 2
KV_L = 640 * KB
ST  = 8 * MB - 256 * KB
ST_L = 128 * KB
XF  = 8 * MB
HF  = 10 * MB
HF_B = 88 * KB
LF  = 16 * MB - 256 * KB
HL  = LF + 16 * KB
UF  = LF + 32 * KB
W1F = LF + 48 * KB
EPOCH = LF + 96 * KB
STAMP = 40 * MB
WS_BYTES = 256 * MB
FL_O, FL_X1, FL_H, FL_X2 = 0, 1, 2, 3
def pi(m):
    a, h, b = m >> 3, (m >> 2) & 1, m & 3
    return 16 * (a >> 1) + 8 * h + 4 * (a & 1) + b
def sigma(m):
    a, h, b = m >> 3, (m >> 2) & 1, m & 3
    return 16 * h + 4 * a + b
KNAME = 'interleave_layers__linear_kernel_hedgehog__glu_gated_reglu__prompt'
assert KVP + 2 * KV_L <= ST and W4P + 8 * 176 * KB <= KVP and HF + 64 * HF_B <= LF
```

```python
import sys, json
from emit import *
from layout import *
from agen import head, desc, TOP
R1 = 96 * KB; R2 = 128 * KB
MF = 'v_mfma_f32_32x32x16_bf16'; MF16 = 'v_mfma_f32_16x16x32_bf16'
LOG2E = 0x3fb8aa3b
class Cfg:
    stamps = False
    D1 = 9; D3 = 9
    X0pre = 12
    gather_n = 24
    tmo = 1 << 16
    w3 = (6, 4, 4, 4)
    w3nt = ''
    touch_w4 = 4
    w4_from = 20
    code_lines = 3
    force_impure = False
def stats_rstd(e, src, dst, sq=False):
    return [f'v_pk_add_f32 {v(src,2)}, {v(src,2)}, {v(src+2,2)}', f'v_pk_add_f32 {v(src+4,2)}, {v(src+4,2)}, {v(src+6,2)}',
      f'v_pk_add_f32 {v(src,2)}, {v(src,2)}, {v(src+4,2)}', f'v_add_f32 v{src}, v{src}, v{src+1}',
      f'v_mul_f32 v{src}, 0x3b000000, v{src}', f'v_mov_b32 v{src+1}, v{src}',
      f'v_permlane32_swap_b32 v{src}, v{src+1}',
      f'v_fma_f32 v{src}, -v{src}, v{src}, v{src+1}', f'v_max_f32 v{src}, 0, v{src}', f'v_add_f32 v{src}, 0x3727c5ac, v{src}',
      f'v_rcp_f32 v{dst}, v{src}' if sq else f'v_rsq_f32 v{dst}, v{src}']
def gen(cfg, name='K1'):
    e = E()
    SRD = 's[4:7]'
    st = {'n': 0, 'names': []}
    cold = []
    def stamp(nm):
        if not cfg.stamps: return
        i = st['n']; st['n'] += 1; st['names'].append(nm)
        e('s_waitcnt lgkmcnt(0)', 's_memtime s[62:63]', 's_waitcnt lgkmcnt(0)', f'v_writelane_b32 v7, s62, {i}')
    def ldsaddr(off): return (f'v{off >> 16}', off & 0xffff)
    class Stream:
        def __init__(s, q=None): s.q = list(q or [])
        def pop(s, n=1):
            for _ in range(n):
                if s.q:
                    x = s.q.pop(0)
                    e(x) if isinstance(x, str) else x()
        def flush(s): s.pop(len(s.q))
    def frag_loads(dst, n, sreg, toks, stride=1024, sc='sc1', va='v0'):
        per = 4096 // stride; q = []
        for i in range(n):
            def f(i=i):
                if i and i % per == 0: e(f's_add_u32 {sreg}, {sreg}, {per * stride}')
                toks[i] = e(f'buffer_load_dwordx4 {dst(i)}, {va}, {SRD}, {sreg} offen offset:{(i % per) * stride} {sc}')
            q.append(f)
        return q
    def dma_loads(n, sreg, mreg, toks, srd=SRD, sc='sc1'):
        q = []
        for i in range(n):
            def f(i=i):
                e(f's_add_u32 m0, {mreg}, {4096 * i}')
                if i: e(f's_add_u32 {sreg}, {sreg}, 4096')
                toks[i] = e(f'buffer_load_dwordx4 v0, {srd}, {sreg} offen {sc} lds')
            q.append(f)
        return q
    def flag_store(sreg):
        l1, l2 = e.label('Limp'), e.label('Lfl')
        e(f's_mov_b64 exec, 1', 's_cmp_eq_u32 s24, 0', f's_cbranch_scc1 {l1}')
        t = e(f'buffer_store_byte v5, off, {SRD}, {sreg}')
        e(f'{l2}:', 's_mov_b64 exec, -1')
        cold.append(f"""{l1}:
            buffer_wbl2 sc1
            s_waitcnt vmcnt(0)
            buffer_store_byte v5, off, {SRD}, {sreg} sc1
            s_branch {l2}""")
        return t
    def poll_ld(vaddr, sreg): return f'buffer_load_ubyte v4, {vaddr}, {SRD}, {sreg} offen sc1'
    def spin(tok, ld, test, inv=True, sleep=0):
        l1, l2, l3 = e.label('Lspin'), e.label('Lok'), e.label('Linv')
        e.wait(tok)
        e(*test)
        e(f's_cbranch_vccnz {l1}', f'{l1}_r:')
        if inv: e('s_cmp_eq_u32 s24, 0', f's_cbranch_scc1 {l3}', f'{l2}:')
        c = [f'{l1}:', 's_mov_b32 s60, 0', f'{l1}_l:'] + ([f's_sleep {sleep}'] if sleep else []) + [ld, 's_add_u32 s60, s60, 1', f's_cmp_ge_u32 s60, {cfg.tmo}',
             f's_cbranch_scc1 {name}_fail', 's_waitcnt vmcnt(0)'] + list(test) + [f's_cbranch_vccnz {l1}_l', f's_branch {l1}_r']
        if inv: c += [f'{l3}:', 'buffer_inv sc1', 's_waitcnt vmcnt(0)', f's_branch {l2}']
        cold.append('\n'.join(c))
    def poll_check(tok, vaddr, sreg, mask, val):
        spin(tok, poll_ld(vaddr, sreg), [f'v_cmp_gt_u32 vcc, {val}, v4', f's_and_b64 vcc, vcc, {mask}' if mask else 's_nop 0'])
    def p24_addrs(base=R1):
        return ['v_lshrrev_b32 v253, 9, v0', 'v_and_b32 v248, 0x1f0, v0', 'v_lshlrev_b32 v249, 7, v253', 'v_xor_b32 v248, v248, v249', 'v_lshl_add_u32 v248, v253, 10, v248',
          's_lshl_b32 s30, s3, 13', f's_add_u32 s30, s30, {base}', 'v_add_u32 v248, s30, v248',
          'v_lshl_add_u32 v252, v253, 9, v3',
          'v_and_b32 v250, 0x70, v0', 's_lshl_b32 s30, s3, 7', 'v_add_u32 v250, s30, v250',
          'v_lshlrev_b32 v251, 1, v250', 'v_lshl_add_u32 v251, v253, 10, v251',
          'v_and_b32 v249, 0x80, v0', 'v_xor_b32 v249, v249, v250', 'v_lshrrev_b32 v253, 7, v0', 'v_lshl_add_u32 v249, v253, 10, v249',
          f'v_add_u32 v249, {base}, v249', 'v_lshl_add_u32 v250, v253, 9, v250']
    def x_soffs(stbuf, kind):
        return ['s_lshl_b32 s42, s26, 15', 's_lshl_b32 s31, s23, 12', 's_add_u32 s42, s42, s31', f's_add_u32 s42, s42, {XF}',
          's_lshl_b32 s43, s26, 7', 's_lshl_b32 s31, s23, 2', 's_add_u32 s43, s43, s31', 's_add_u32 s43, s43, s3', f's_add_u32 s43, s43, {LF + kind * 32}',
          's_lshl_b32 s45, s26, 11', 's_add_u32 s45, s45, s31', f's_add_u32 s45, s45, {ST + stbuf * ST_L}']
    x_next = [f's_add_u32 s42, s42, {128 * KB}', 's_add_u32 s45, s45, 8192', 's_add_u32 s43, s43, 512']
    def stats_store(res, T, sreg, sc=''):
        e(f'v_pk_add_f32 {v(T,2)}, {v(res,2)}, {v(res+2,2)}', f'v_pk_mul_f32 {v(T+2,2)}, {v(res,2)}, {v(res,2)}',
          f'v_pk_add_f32 {v(T,2)}, {v(T,2)}, {v(res+4,2)}', f'v_pk_fma_f32 {v(T+2,2)}, {v(res+2,2)}, {v(res+2,2)}, {v(T+2,2)}',
          f'v_pk_add_f32 {v(T,2)}, {v(T,2)}, {v(res+6,2)}', f'v_pk_fma_f32 {v(T+2,2)}, {v(res+4,2)}, {v(res+4,2)}, {v(T+2,2)}',
          f'v_add_f32 v{T}, v{T}, v{T+1}', f'v_pk_fma_f32 {v(T+2,2)}, {v(res+6,2)}, {v(res+6,2)}, {v(T+2,2)}',
          f'v_add_f32 v{T+2}, v{T+2}, v{T+3}',
          f'v_permlane32_swap_b32 v{T}, v{T+2}', f'v_add_f32 v{T}, v{T}, v{T+2}',
          f'v_add_f32 v{T}, v{T}, v{T} row_ror:8 row_mask:0xf bank_mask:0xf', f'v_mov_b32 v{T+1}, v{T}',
          f'v_permlane16_swap_b32 v{T}, v{T+1}', f'v_add_f32 v{T}, v{T}, v{T+1}',
          's_mov_b32 exec_lo, 0xff', 's_mov_b32 exec_hi, 0xff')
        t = e(f'buffer_store_dword v{T}, v251, {SRD}, {sreg} offen {sc}')
        e('s_mov_b64 exec, -1')
        return t
    soff_rowmajor = ['s_lshl_b32 s42, s26, 15', 's_lshl_b32 s31, s3, 13', 's_add_u32 s42, s42, s31', 's_lshl_b32 s31, s23, 7', 's_add_u32 s42, s42, s31']
    def w1_src(tile, sreg):
        e(f's_mul_i32 {sreg}, s21, {96 * KB}', f's_add_u32 {sreg}, {sreg}, s28', f's_add_u32 {sreg}, {sreg}, {W1P + tile * 32 * KB}')
    def w1_dma(tile, region, toks, sreg='s40', mreg='s41'):
        w1_src(tile, sreg); e(f's_add_u32 {mreg}, s28, {region}')
        return dma_loads(8, sreg, mreg, toks)
    e(f"""
    s_cmp_ge_u32 s2, 256
    s_cbranch_scc1 {name}_end
    s_load_dwordx16 s[64:79], s[0:1], 0
    s_load_dwordx4 s[12:15], s[0:1], 64
    s_load_dwordx2 s[4:5], s[0:1], 80
    s_getpc_b64 s[96:97]
    v_lshrrev_b32 v1, 6, v0
    v_and_b32 v8, 63, v0
    v_readfirstlane_b32 s3, v1
    v_and_b32 v3, 31, v8
    v_lshlrev_b32 v0, 4, v8
    v_add_u32 v1, 0x10000, v0
    v_add_u32 v2, 0x20000, v0
    v_mov_b32 v5, 1
    v_mov_b32 v7, 0
    s_and_b32 s18, s2, 7
    s_lshr_b32 s19, s2, 3
    s_lshr_b32 s20, s19, 4
    s_and_b32 s21, s19, 15
    s_lshr_b32 s22, s19, 3
    s_and_b32 s23, s19, 7
    s_lshl_b32 s30, s18, 3
    s_add_u32 s27, s30, s3
    s_lshl_b32 s31, s20, 2
    s_add_u32 s25, s27, s31
    s_add_u32 s26, s30, s22
    s_lshl_b32 s28, s3, 10
    s_mov_b32 s6, {WS_BYTES}
    s_mov_b32 s7, 0x20000
    s_mov_b32 s10, {2 * MB}
    s_mov_b32 s11, 0x20000
    s_mov_b32 s24, 1
    s_getreg_b32 s29, hwreg(HW_REG_XCC_ID)
    s_and_b32 s29, s29, 15
    s_mov_b32 s87, 0x20000
    s_mov_b32 s90, 0
    s_mov_b32 s91, 0x20000
    s_mov_b32 s94, {WS_BYTES}
    s_mov_b32 s95, 0x20000
    v_lshrrev_b32 v9, 5, v8
    v_lshrrev_b32 v10, 3, v3
    v_bfe_u32 v11, v3, 2, 1
    v_and_b32 v12, 3, v3
    v_lshrrev_b32 v14, 1, v10
    v_and_b32 v13, 1, v10
    v_lshl_add_u32 v13, v13, 2, v12
    v_lshl_add_u32 v15, v11, 3, v13
    v_lshl_add_u32 v15, v14, 4, v15
    v_lshl_add_u32 v16, v10, 2, v12
    v_lshl_add_u32 v16, v11, 4, v16
    v_mov_b32 v17, v0
    ; x tile voffset (coalesced): v18 = (l/8)*1024 + (l%8)*16
    v_lshrrev_b32 v18, 3, v8
    v_and_b32 v19, 0x70, v0
    v_lshl_add_u32 v18, v18, 10, v19
    s_mov_b32 s83, 0
    s_mov_b32 s81, 0
    s_mov_b32 s39, 0xbb000000
    """)
    e(*soff_rowmajor)
    e(f's_add_u32 s43, s42, {128 * KB}', 's_waitcnt lgkmcnt(0)')
    if cfg.stamps:
        stamp('start'); e('s_memrealtime s[62:63]', 's_waitcnt lgkmcnt(0)', 'v_writelane_b32 v7, s62, 62')
    e(f"""
    s_mov_b32 s8, s64
    s_mov_b32 s9, s65
    s_add_u32 s30, s4, {EPOCH}
    s_addc_u32 s31, s5, 0
    s_load_dword s80, s[30:31], 0
    buffer_load_dwordx4 v[184:187], v18, s[8:11], s42 offen
    """)
    tRes = e('buffer_load_dwordx4 v[188:191], v18, s[8:11], s43 offen')
    e(f"""
    s_mov_b32 s16, s14
    s_mov_b32 s17, s15
    s_mov_b32 s14, {2 * MB}
    s_mov_b32 s15, 0x20000
    s_mov_b32 s88, s68
    s_mov_b32 s89, s69
    s_mov_b32 s92, s4
    s_mov_b32 s93, s5
    s_cmp_ge_u32 s2, 136
    s_cbranch_scc1 U_B
    s_cmp_ge_u32 s2, 48
    s_cbranch_scc1 U_GU
    ; ---- W1 strip
    s_lshr_b32 s37, s19, 1
    s_and_b32 s83, s19, 1
    s_lshl_b32 s82, s18, 1
    s_add_u32 s82, s82, s83
    s_add_u32 s38, s37, 1
    s_lshl_b32 s38, s38, 10
    s_cmp_eq_u32 s37, 2
    s_cselect_b32 s38, 0, s38
    s_lshl_b32 s32, s82, 6
    s_add_u32 s32, s32, s38
    s_mul_i32 s31, s3, {128 * 3072}
    s_add_u32 s32, s32, s31
    s_mov_b32 s33, {32 * 3072}
    s_mov_b32 s34, 3072
    s_mov_b32 s84, s66
    s_mov_b32 s85, s67
    s_mov_b32 s86, {512 * 3072}
    s_mul_i32 s35, s82, 3
    s_add_u32 s35, s35, s37
    s_lshl_b32 s35, s35, 15
    s_lshl_b32 s31, s3, 13
    s_add_u32 s35, s35, s31
    s_cmp_eq_u32 s37, 1
    s_cselect_b32 s81, 1, 2
    s_cselect_b32 s90, 0, 16384
    s_mov_b32 s36, 4096
    s_mov_b32 s37, 2048
    s_mov_b32 s38, 1024
    s_branch U_gen
    U_GU:
    s_mul_i32 s36, s18, 11
    s_add_u32 s36, s36, s19
    s_sub_u32 s36, s36, 6
    s_cmp_ge_u32 s36, 86
    s_cselect_b32 s86, 0, {512 * 2752}
    s_cselect_b32 s94, 0, s94
    s_cmp_ge_u32 s36, 43
    s_cselect_b32 s84, s76, s74
    s_cselect_b32 s85, s77, s75
    s_cselect_b32 s37, 43, 0
    s_cselect_b32 s38, 256, 0
    s_sub_u32 s36, s36, s37
    s_lshl_b32 s32, s36, 6
    s_mul_i32 s31, s3, {128 * 2752}
    s_add_u32 s32, s32, s31
    s_mov_b32 s33, {32 * 2752}
    s_mov_b32 s34, 2752
    ; per-lane tile g = 2u + (n>>4): dst = (g/3)*96K + (g%3)*1024 + hh*512 + isUp*256 + (n&15)*16
    s_lshl_b32 s36, s36, 1
    v_add_u32 v17, s36, v14
    v_mul_u32_u24 v19, 21846, v17
    v_lshrrev_b32 v19, 16, v19
    v_mul_u32_u24 v19, {96 * KB - 3 * KB}, v19
    v_lshl_add_u32 v17, v17, 10, v19
    v_lshl_add_u32 v17, v9, 9, v17
    v_and_b32 v19, 0xf0, v0
    v_add3_u32 v17, v17, v19, s38
    s_mul_i32 s35, s3, {8 * 3072}
    s_add_u32 s35, s35, {W3P}
    s_mov_b32 s36, 12288
    s_mov_b32 s37, 6144
    s_mov_b32 s38, 3072
    s_branch U_gen
    U_B:
    s_mov_b32 s39, 0
    s_mov_b32 s33, 64
    s_mov_b32 s34, 1024
    s_mov_b32 s37, 1024
    s_mov_b32 s38, 2048
    s_cmp_ge_u32 s2, 152
    s_cselect_b32 s84, s78, s70
    s_cselect_b32 s85, s79, s71
    s_cselect_b32 s86, {1376 * 1024}, s10
    s_cselect_b32 s36, {88 * 2048}, s7
    s_cselect_b32 s35, {W4P}, 0
    s_cselect_b32 s31, 152, 0
    s_cbranch_scc1 U_B2
    s_mov_b32 s86, {512 * 1024}
    s_mov_b32 s36, {32 * 2048}
    s_mov_b32 s35, {W2P}
    s_mov_b32 s31, 136
    v_mov_b32 v15, v16
    U_B2:
    s_sub_u32 s30, s2, s31
    s_cmp_ge_u32 s2, 195
    s_cselect_b32 s86, 0, s86
    s_cselect_b32 s94, 0, s94
    s_cselect_b32 s30, 0, s30
    s_lshl_b32 s32, s30, 15
    s_lshl_b32 s31, s3, 8
    s_add_u32 s32, s32, s31
    s_lshl_b32 s31, s30, 12
    s_add_u32 s35, s35, s31
    s_mul_i32 s31, s3, s36
    s_lshl_b32 s31, s31, 1
    s_add_u32 s35, s35, s31
    U_gen:
    ; DMA voffset v19 = (l/4)*stride + ((l%4) ^ ((l>>4)&3))*16
    v_lshrrev_b32 v19, 2, v8
    v_mul_lo_u32 v19, v19, s34
    v_lshrrev_b32 v20, 4, v8
    v_xor_b32 v20, v20, v12
    v_lshl_add_u32 v19, v20, 4, v19
    s_lshl_b32 s34, s34, 4
    s_lshl_b32 s44, s3, 13
    s_lshl_b32 s30, s33, 1
    s_mul_i32 s31, s30, s83
    s_add_u32 s40, s32, s31
    s_sub_u32 s31, s30, s31
    s_add_u32 s46, s32, s31
    s_lshl_b32 s31, s83, 12
    s_add_u32 s41, s44, s31
    s_xor_b32 s47, s41, 4096
    """)
    for sr, mr in (('s40', 's41'), ('s46', 's47')):
        for j in range(4):
            e(f's_add_u32 m0, {mr}, {j * 1024}')
            if j == 1 or j == 3: e(f's_add_u32 s31, {sr}, s34')
            if j == 2: e(f's_add_u32 {sr}, {sr}, s33')
            tU = e(f'buffer_load_dwordx4 v19, s[84:87], {"s31" if j & 1 else sr} offen lds')
    e('s_lshl_b32 s31, s82, 10', 's_and_b32 s31, s31, 0x3fff', 'v_lshl_add_u32 v21, v10, 2, v12', 'v_lshl_add_u32 v21, v9, 7, v21', 'v_lshl_add_u32 v21, v11, 8, v21', 'v_lshlrev_b32 v21, 1, v21')
    for d in range(4):
        e(f'buffer_load_ushort v{24+d}, v21, s[88:91], s31 offen offset:{64*d}')
        tPhi = e(f'buffer_load_ushort v{28+d}, v21, s[88:91], s31 offen offset:{64*d+32}')
    e('s_lshl_b32 s30, s19, 2', 's_add_u32 s48, s30, s3', f's_mul_i32 s30, s48, {cfg.code_lines}', 'v_add_u32 v22, s30, v8', 'v_lshlrev_b32 v22, 7, v22',
      f'v_min_u32 v22, {name}_fail-{name}_start, v22', f's_mov_b64 exec, {(1 << cfg.code_lines) - 1}', 'global_load_dword v23, v22, s[96:97]')
    e('s_mov_b64 exec, -1', 'v_mov_b32 v32, -1', 'v_mov_b32 v33, -1', 'v_mov_b32 v34, -1', 'v_mov_b32 v35, -1',
      's_lshl_b32 s30, s21, 2', 's_add_u32 s30, s30, s3', 's_mul_i32 s98, s30, 10240', f's_add_u32 s98, s98, {KVP}',
      's_lshl_b32 s31, s18, 1', 's_add_u32 s31, s31, s20', 's_mul_i32 s99, s31, 640', 's_add_u32 s99, s99, s98', f's_add_u32 s31, s99, {KV_L}',
      's_mov_b32 exec_hi, 15',
      f'buffer_store_dwordx4 v[32:35], v0, {SRD}, s99 offen sc1', f'buffer_store_dwordx4 v[32:35], v0, {SRD}, s31 offen sc1',
      's_mov_b64 exec, -1')
    e('v_mov_b32 v36, 0', 'v_lshlrev_b32 v37, 1, v8', 's_lshl_b32 s30, s18, 10', 's_lshl_b32 s31, s48, 7', 's_add_u32 s30, s30, s31', f's_add_u32 s30, s30, {LF}',
      's_cmp_lt_u32 s48, 8', 's_cselect_b64 exec, -1, 0', f'buffer_store_short v36, v37, {SRD}, s30 offen sc1', 's_mov_b64 exec, -1')
    e('s_lshr_b32 s30, s48, 4', 's_lshl_b32 s31, s18, 3', 's_add_u32 s30, s30, s31', f's_mul_i32 s30, s30, {HF_B}', 's_and_b32 s31, s48, 15', f's_mul_i32 s31, s31, {43 * 128}',
      's_add_u32 s30, s30, s31', f's_add_u32 s30, s30, {HF}', 'v_lshlrev_b32 v38, 3, v0', 'v_add_u32 v38, s30, v38',
      's_lshl_b32 s30, s18, 14', 's_lshl_b32 s31, s48, 7', 's_add_u32 s30, s30, s31', f's_add_u32 s30, s30, {ST + ST_L}', 'v_writelane_b32 v38, s30, 43',
      's_mov_b32 exec_hi, 0xfff', f'buffer_load_dword v39, v38, {SRD}, 0 offen', 's_mov_b64 exec, -1')
    e(*p24_addrs()); e(*x_soffs(0, 0))
    e('v_and_b32 v20, 7, v8', 'v_lshrrev_b32 v21, 3, v8', 'v_lshl_add_u32 v20, v20, 3, v21', 'v_lshlrev_b32 v20, 2, v20')
    e('v_bfe_u32 v22, v15, 2, 2', 'v_xor_b32 v22, v22, v9', 'v_lshlrev_b32 v22, 4, v22', 'v_lshl_add_u32 v22, v15, 6, v22', 'v_add_u32 v40, s44, v22', 'v_xor_b32 v41, 32, v40')
    e.wait(tRes)
    stamp('xarr')
    for i in range(8): e(f'ds_bpermute_b32 v{192+i}, v20, v{184+i}')
    e("""
    v_and_b32 v42, 1, v13
    v_lshlrev_b32 v42, 4, v42
    v_mov_b32 v43, 0x3f80
    v_lshlrev_b32 v42, v42, v43
    v_lshrrev_b32 v43, 1, v13
    s_cmp_eq_u32 s81, 0
    s_cselect_b64 vcc, -1, 0
    v_cndmask_b32 v44, v11, v14, vcc
    v_cndmask_b32 v45, v14, v11, vcc
    v_cmp_eq_u32 vcc, v45, v9
    s_cmp_eq_u32 s81, 2
    s_cselect_b64 vcc, 0, vcc
    v_cndmask_b32 v42, 0, v42, vcc
    """)
    for d in range(4): e(f'v_cmp_eq_u32 vcc, {d}, v43', f'v_cndmask_b32 v{48+d}, 0, v42, vcc')
    e('s_waitcnt lgkmcnt(0)')
    e(f'buffer_store_dwordx4 v[192:195], v250, {SRD}, s42 offen sc1', f's_add_u32 s42, s42, {128 * KB}', f'buffer_store_dwordx4 v[196:199], v250, {SRD}, s42 offen sc1')
    for i in range(8): e(f'v_lshlrev_b32 v{200+2*i}, 16, v{192+i}', f'v_and_b32 v{201+2*i}, 0xffff0000, v{192+i}')
    stats_store(200, 216, 's45', 'sc1'); e('s_add_u32 s45, s45, 8192')
    tXs = stats_store(208, 220, 's45', 'sc1')
    for i in range(16): e(f'v_accvgpr_write_b32 a{240+i}, v{200+i}')
    e('s_and_b32 s80, s80, 0xfffffff0', 's_add_u32 s80, s80, 0x9e3779b0')
    e.wait(tPhi)
    stamp('uarr')
    ua = []
    for t in range(4):
        e(f'ds_read_b128 {v(136+8*t,4)}, v40 offset:{t*2048}')
        ua.append(e(f'ds_read_b128 {v(140+8*t,4)}, v41 offset:{t*2048}'))
    for d in range(4): e(f'v_lshl_or_b32 v{24+d}, v{28+d}, 16, v{24+d}', f'v_or_b32 v{48+d}, v{48+d}, v{24+d}')
    e('v_cmp_eq_u32 vcc, 0, v44')
    for d in range(4): e(f'v_cndmask_b32 v{24+d}, 0, v{48+d}, vcc')
    e('v_cmp_eq_u32 vcc, 1, v44')
    for d in range(4): e(f'v_cndmask_b32 v{28+d}, 0, v{48+d}, vcc')
    for t in range(4):
        e.wait(ua[t])
        e(f'{MF} {v(64+16*t,16)}, {v(136+8*t,4)}, v[24:27], 0')
        e(f'{MF} {v(64+16*t,16)}, {v(140+8*t,4)}, v[28:31], {v(64+16*t,16)}')
    e('v_lshl_add_u32 v46, v8, 2, s44', 'v_lshlrev_b32 v47, 2, v3')
    e('v_pk_add_f32 v[52:53], v[64:65], v[66:67]', 'v_pk_add_f32 v[54:55], v[68:69], v[70:71]')
    for i in range(72, 128, 4):
        e(f'v_pk_add_f32 v[52:53], v[52:53], {v(i,2)}', f'v_pk_add_f32 v[54:55], v[54:55], {v(i+2,2)}')
    e('v_pk_add_f32 v[52:53], v[52:53], v[54:55]', 'v_add_f32 v52, v52, v53', 'ds_write_b32 v46, v52')
    e('s_lshl_b32 s52, s18, 7', f's_add_u32 s52, s52, {HL}', 's_lshl_b32 s31, s19, 2', 's_add_u32 s53, s52, s31', 's_or_b32 s30, s80, s29', 'v_mov_b32 v4, s30', 'v_add_u32 v60, 128, v47')
    e.wait(tXs); e('s_waitcnt lgkmcnt(0)', 's_barrier')
    e('ds_read2st64_b32 v[52:53], v47 offset0:0 offset1:32', 'ds_read2st64_b32 v[54:55], v47 offset0:64 offset1:96',
      'ds_read2st64_b32 v[56:57], v60 offset0:0 offset1:32', 'ds_read2st64_b32 v[58:59], v60 offset0:64 offset1:96')
    e('s_cmp_eq_u32 s3, 0', 's_cselect_b64 exec, 1, 0', f'buffer_store_dword v4, off, {SRD}, s53 sc1', 's_mov_b64 exec, -1')
    e('s_waitcnt lgkmcnt(0)', 'v_pk_add_f32 v[52:53], v[52:53], v[54:55]', 'v_pk_add_f32 v[56:57], v[56:57], v[58:59]', 'v_pk_add_f32 v[52:53], v[52:53], v[56:57]',
      'v_add_f32 v52, v52, v53', 's_cmp_eq_u32 s39, 0', 's_cselect_b64 vcc, 0, -1', 'v_mul_f32 v52, s39, v52', 'v_cndmask_b32 v52, 0, v52, vcc')
    for t in range(4):
        for u in range(2):
            b = 64 + 16 * t + 8 * u
            for i in range(0, 8, 2): e(f'v_pk_add_f32 {v(b+i,2)}, {v(b+i,2)}, v[52:53] op_sel:[0,0] op_sel_hi:[1,0]')
            for d in range(4): e(f'v_cvt_pk_bf16_f32 v{b+d}, v{b+2*d}, v{b+2*d+1}')
            if u == 0:
                if t == 0: e('s_mov_b32 s31, s35')
                if t == 1: e('s_add_u32 s31, s35, s37')
                if t == 2: e('s_add_u32 s35, s35, s36', 's_mov_b32 s31, s35')
                if t == 3: e('s_add_u32 s31, s35, s37')
            else: e('s_add_u32 s31, s31, s38')
            tUs = e(f'buffer_store_dwordx4 {v(b,4)}, v17, s[92:95], s31 offen sc1')
    stamp('ustored')
    e('v_lshlrev_b32 v6, 2, v3')
    hello_ld = f'buffer_load_dword v4, v6, {SRD}, s52 offen sc1'
    tH = e(hello_ld)
    e('s_lshl_b32 s30, s82, 7', 's_lshr_b32 s31, s19, 1', 's_lshl_b32 s31, s31, 2', 's_add_u32 s30, s30, s31', f's_add_u32 s30, s30, {W1F}',
      's_cmp_lt_u32 s2, 48', f's_cselect_b32 s30, s30, {WS_BYTES}', 'v_lshlrev_b32 v46, 7, v0', 'v_add_u32 v46, s30, v46',
      's_lshl_b32 s31, s2, 2', f's_add_u32 s31, s31, {UF}', 'v_writelane_b32 v46, s31, 8', 'v_mov_b32 v47, s80',
      's_cmp_lt_u32 s19, 29', f's_cselect_b32 s94, {WS_BYTES}, 0')
    e.wait(tUs); e('s_barrier')
    e('s_cmp_eq_u32 s3, 0', 's_cselect_b64 exec, 0x1ff, 0', f'buffer_store_dword v47, v46, {SRD}, 0 offen sc1', 's_mov_b64 exec, -1')
    stamp('uflag')
    spin(tH, hello_ld, ['v_xor_b32 v4, s80, v4', 'v_cmp_lt_u32 vcc, 15, v4', 's_nop 0'], inv=False, sleep=2)
    e('v_cmp_ne_u32 vcc, s29, v4', 's_cmp_eq_u64 vcc, 0', f's_cselect_b32 s24, {0 if cfg.force_impure else 1}, 0')
    stamp('hello')

    bgW3t, bgW2t, bgW4t = {}, {}, {}
    tWk, tWv = {}, {}
    XB = 8; aK, aV, aQ, EB, RING = 136, 152, 168, 184, 232
    p1_pre = ['v_lshlrev_b32 v217, 1, v0', 's_lshl_b32 s42, s25, 15', f's_add_u32 s42, s42, {XF}', 's_lshl_b32 s43, s25, 11', f's_add_u32 s43, s43, {ST}']
    for L in range(2):
        last = L == 1
        tX = {}; tS = {}
        def st_ld():
            e(f'buffer_load_dwordx4 v[220:223], v217, {SRD}, s43 offen sc1')
            tS[0] = e(f'buffer_load_dwordx4 v[224:227], v217, {SRD}, s43 offen offset:16 sc1')
        if L == 0:
            e(*p1_pre)
            xq = frag_loads(lambda i: v(XB + 4 * i, 4), 32, 's42', tX)
            for f in xq[:cfg.X0pre]: f()
            e('s_lshl_b32 s30, s18, 11', 's_lshl_b32 s31, s21, 7', 's_add_u32 s44, s30, s31', f's_add_u32 s44, s44, {W1F}', 'v_and_b32 v6, 4, v6')
            ld = f'buffer_load_dword v4, v6, {SRD}, s44 offen sc1'
            t = e(ld)
            kq = w1_dma(0, R1, tWk); vq = w1_dma(1, R2, tWv, 's56', 's57')
            spin(t, ld, ['v_cmp_ne_u32 vcc, s80, v4', 's_nop 0'], inv=False, sleep=1)
            stamp('w1f')
            ch = [[kq[2*c], vq[2*c], kq[2*c+1], vq[2*c+1]] for c in range(4)]
            uf_ld = f'buffer_load_dwordx4 v[208:211], v0, {SRD}, s58 offen sc1'
            def lf_touch():
                e('s_lshl_b32 s30, s18, 10', f's_add_u32 s30, s30, {LF}', f'buffer_load_dword v212, v0, {SRD}, s30 offen sc1')
            def uf_issue():
                e(f's_mov_b32 s58, {UF}'); tS['uf'] = e(uf_ld)
            xs = Stream(ch[0] + ch[1] + xq[cfg.X0pre:16] + ch[2] + xq[max(16, cfg.X0pre):24] + ch[3] + [st_ld] + xq[24:] + [lf_touch, uf_issue])
            xs.pop(8)
        else:
            xs = Stream(frag_loads(lambda i: v(XB + 4 * i, 4), 32, 's42', tX))
            xs.q.insert(16, st_ld)
            xs.pop(cfg.D1)
            e('s_waitcnt lgkmcnt(0)', 's_barrier')
        tW = {}
        def rdKV(n):
            ks, t = n >> 1, n & 1
            if L == 0 and n % 16 == 0:
                c = n // 16
                while 2 * c + 1 not in tWv: xs.pop(1)
                e.wait(tWk[2 * c + 1], tWv[2 * c + 1]); e('s_barrier')
            r, o = ldsaddr((R1, R2)[t] + ks * 1024)
            tW[n] = e(f'ds_read_b128 {v(RING + 4 * (n % 6), 4)}, {r} offset:{o}')
        for n in range(5): rdKV(n)
        stamp('Wready')
        fill = Stream()
        for n in range(64):
            ks, t = n >> 1, n & 1
            if n + 5 < 64: rdKV(n + 5)
            while ks not in tX: xs.pop(1)
            e.wait(tW[n], tX[ks])
            acc = v((aK, aV)[t], 16)
            e(f'{MF} {acc}, {v(RING + 4 * (n % 6), 4)}, {v(XB + 4 * ks, 4)}, {acc if ks else 0}')
            if t == 0 or (L == 0 and ks % 2 == 0): xs.pop(1)
            if n == 50:
                e.wait(tS[0])
                fill.q = stats_rstd(e, 220, 228) + [f'v_mul_f32 v229, {LOG2E}, v228'] + [
                  'v_and_b32 v218, 0x1f0, v0', 'v_lshlrev_b32 v218, 1, v218', 'v_bfe_u32 v6, v0, 6, 1', 'v_lshl_add_u32 v218, v6, 4, v218',
                  'v_lshrrev_b32 v6, 9, v0', 'v_lshl_add_u32 v218, v6, 12, v218', f's_add_u32 s31, s28, {R2}', 'v_add_u32 v218, s31, v218', 'v_xor_b32 v219, 16, v218',
                  'v_lshrrev_b32 v6, 1, v0', 'v_bfe_u32 v216, v0, 8, 1', 'v_lshlrev_b32 v216, 4, v216', 'v_xor_b32 v6, v6, v216',
                  's_lshr_b32 s30, s3, 1', 's_and_b32 s31, s3, 1', 's_lshl_b32 s30, s30, 12', 's_lshl_b32 s31, s31, 13',
                  f's_add_u32 s30, s30, {R2}', 's_add_u32 s31, s31, s30', 's_add_u32 s30, s30, 16384', 'v_add_u32 v216, s31, v6', 'v_add_u32 v217, s30, v6']
            fill.pop(3)
        xs.flush(); fill.flush()
        tWq = {}
        wq = Stream(w1_dma(2, R1, tWq))
        e('s_barrier')
        stamp('kvgemm')
        bg = Stream()
        if L == 0:
            spin(tS['uf'], uf_ld, ['v_and_b32 v212, v208, v209', 'v_or3_b32 v213, v208, v209, v210', 'v_and_b32 v212, v212, v210', 'v_or_b32 v213, v213, v211', 'v_and_b32 v212, v212, v211',
                                   'v_cmp_ne_u32 vcc, s80, v212', 'v_cmp_ne_u32 s[30:31], s80, v213', 's_or_b64 vcc, vcc, s[30:31]'], inv=False, sleep=2)
        wq.pop(2)
        def softmax(acc, normalize_pos, hook):
            ops = []; o = ops.append
            mx, mn = 230, 231
            o(f'v_max3_f32 v{mx}, v{acc}, v{acc+1}, v{acc+2}'); o(f'v_min3_f32 v{mn}, v{acc}, v{acc+1}, v{acc+2}')
            for i in range(3, 15, 2):
                o(f'v_max3_f32 v{mx}, v{mx}, v{acc+i}, v{acc+i+1}'); o(f'v_min3_f32 v{mn}, v{mn}, v{acc+i}, v{acc+i+1}')
            o(f'v_max_f32 v{mx}, v{mx}, v{acc+15}'); o(f'v_min_f32 v{mn}, v{mn}, v{acc+15}')
            o(f'v_pk_mul_f32 v[230:231], v[230:231], v[228:229] op_sel:[0,1] op_sel_hi:[1,1]')
            for i in range(0, 16, 2):
                o(f'v_pk_fma_f32 {v(EB+i,2)}, {v(acc+i,2)}, v[228:229], v[230:231] op_sel:[0,1,0] op_sel_hi:[1,1,0] neg_lo:[0,0,1] neg_hi:[0,0,1]')
            for i in range(0, 16, 2):
                o(f'v_pk_fma_f32 {v(EB+16+i,2)}, {v(acc+i,2)}, v[228:229], v[230:231] op_sel:[0,1,1] op_sel_hi:[1,1,1] neg_lo:[1,0,0] neg_hi:[1,0,0]')
            for i in range(32): o(f'v_exp_f32 v{EB+i}, v{EB+i}')
            o(f'v_pk_add_f32 v[220:221], {v(EB,2)}, {v(EB+2,2)}'); o(f'v_pk_add_f32 v[222:223], {v(EB+16,2)}, {v(EB+18,2)}')
            for i in range(4, 16, 2):
                o(f'v_pk_add_f32 v[220:221], v[220:221], {v(EB+i,2)}'); o(f'v_pk_add_f32 v[222:223], v[222:223], {v(EB+16+i,2)}')
            o('v_add_f32 v220, v220, v221'); o('v_add_f32 v222, v222, v223')
            if normalize_pos:
                o('v_rcp_f32 v224, v220'); o('v_rcp_f32 v225, v222')
                for i in range(0, 16, 2): o(f'v_pk_mul_f32 {v(EB+i,2)}, {v(EB+i,2)}, v[224:225] op_sel:[0,0] op_sel_hi:[1,0]')
            else: o('v_rcp_f32 v225, v222')
            for i in range(8): o(f'v_cvt_pk_bf16_f32 v{EB+i}, v{EB+2*i}, v{EB+2*i+1}')
            if normalize_pos:
                o(f'ds_write_b128 v218, {v(EB,4)}'); o(f'ds_write_b128 v219, {v(EB+4,4)}')
            else: o('v_mul_f32 v225, v225, v220')
            for h in range(2):
                for i in range(8 * h, 8 * h + 8, 2): o(f'v_pk_mul_f32 {v(EB+16+i,2)}, {v(EB+16+i,2)}, v[224:225] op_sel:[0,1] op_sel_hi:[1,1]')
                for i in range(4 * h, 4 * h + 4): o(f'v_cvt_pk_bf16_f32 v{EB+16+i}, v{EB+16+2*i}, v{EB+16+2*i+1}')
                if normalize_pos: o(f'ds_write_b128 v{218+h}, {v(EB+16+4*h,4)} offset:8192')
            for i, x in enumerate(ops):
                e(x); hook(i)
        def vpack(i):
            if i == 33:
                for j in range(0, 16, 2): e(f'v_pk_mul_f32 {v(aV+j,2)}, {v(aV+j,2)}, v[228:229] op_sel:[0,0] op_sel_hi:[1,0]')
                for j in range(8): e(f'v_cvt_pk_bf16_f32 v{aV+j}, v{aV+2*j}, v{aV+2*j+1}')
                e(f'ds_write_b128 v218, {v(aV,4)} offset:16384', f'ds_write_b128 v219, {v(aV+4,4)} offset:16384')
        softmax(aK, True, vpack)
        wq.pop(2)
        e('s_waitcnt lgkmcnt(0)', 's_barrier')
        stamp('smk')
        tt = []
        for b in range(4):
            for rd in range(2): e(f'ds_read_b64_tr_b16 {v(136+8*b+2*rd,2)}, v216 offset:{b*1024+rd*512}')
            for rd in range(2): t = e(f'ds_read_b64_tr_b16 {v(140+8*b+2*rd,2)}, v217 offset:{b*1024+rd*512}')
            tt.append(t)
            if b == 2:
                for i in range(4): e(f'v_mov_b32 v{184+i}, 0x3f803f80')
        wq.pop(2)
        for b in range(4):
            e.wait(tt[b])
            e(f'{MF16} v[188:191], {v(136+8*b,4)}, {v(140+8*b,4)}, {"v[188:191]" if b else 0}')
            e(f'{MF16} v[192:195], {v(136+8*b,4)}, v[184:187], {"v[192:195]" if b else 0}')
        e('v_lshrrev_b32 v6, 4, v0', 'v_lshrrev_b32 v216, 9, v0', 'v_lshlrev_b32 v217, 8, v216', 'v_sub_u32 v217, v0, v217', 's_mov_b32 s30, 0x00010001', 's_mov_b32 s31, 0x00010001')
        e('v_cvt_pk_bf16_f32 v188, v188, v189', 'v_cvt_pk_bf16_f32 v189, v190, v191', 's_mov_b64 exec, s[30:31]')
        e(f'buffer_store_dwordx4 v[192:195], v6, {SRD}, s99 offen offset:512 sc1')
        e('s_mov_b64 exec, -1', 'v_permlane16_swap_b32 v188, v190', 'v_permlane16_swap_b32 v189, v191', 's_mov_b32 exec_lo, 0xffff', 's_mov_b32 exec_hi, 0xffff')
        e(f'buffer_store_dwordx4 v[188:191], v217, {SRD}, s99 offen sc1')
        e('s_mov_b64 exec, -1')
        stamp('kvpub')
        wq.flush()
        if L == 0:
            e(f's_mul_i32 s45, s23, {64 * KB}', 's_lshl_b32 s31, s3, 14', 's_add_u32 s45, s45, s31', f's_add_u32 s45, s45, {W2P}')
            bg.q += frag_loads(lambda i: a(4 * i, 4), 16, 's45', bgW2t)
            e(f's_mul_i32 s46, s19, {96 * KB}', 's_add_u32 s46, s46, s28', f's_add_u32 s46, s46, {W3P}')
            w3s = Stream(dma_loads(24, 's46', 's28', bgW3t, 's[92:95]', 'sc1 ' + cfg.w3nt))
            bg.pop(4)
        e('v_lshl_add_u32 v217, v216, 7, v0', 'v_and_b32 v216, 15, v6', 'v_mul_u32_u24 v216, 640, v216', 'v_and_b32 v6, 0x30, v6', 'v_add_u32 v216, v216, v6', 's_mov_b32 s51, s98')
        e.wait(tWq[7]); e('s_barrier')
        tW = {}; tG = {}
        def rdQ(n):
            r, o = ldsaddr(R1 + n * 1024)
            tW[n] = e(f'ds_read_b128 {v(RING + 4 * (n % 6), 4)}, {r} offset:{o}')
        gs = Stream(frag_loads(lambda i: v(136 + 4 * i, 4), 8, 's51', tG, stride=1280, va='v217'))
        gz_ld = f'buffer_load_dwordx4 v[8:11], v216, {SRD}, s98 offen offset:512 sc1'
        def gz(): tG['z'] = e(gz_ld)
        gs.q.append(gz)
        KVS = R2 + 24 * KB; ZS = KVS + 2048
        fill = Stream(
            ['v_bfe_u32 v16, v0, 4, 1', 'v_lshlrev_b32 v16, 4, v16', 'v_mov_b32 v17, 0x3f80', 'v_lshlrev_b32 v16, v16, v17', 'v_bfe_u32 v17, v0, 7, 1', 'v_bfe_u32 v18, v0, 8, 1',
             'v_cmp_eq_u32 vcc, v17, v18', 'v_bfe_u32 v17, v0, 5, 2', 's_nop 0', 'v_cndmask_b32 v16, 0, v16, vcc']
            + [x for d in range(4) for x in (f'v_cmp_eq_u32 vcc, {d}, v17', 's_nop 1', f'v_cndmask_b32 v{12+d}, 0, v16, vcc')]
            + ['v_and_b32 v218, 0xf0, v0', 'v_lshlrev_b32 v218, 1, v218', 'v_lshrrev_b32 v219, 8, v0', 'v_lshlrev_b32 v219, 3, v219', 'v_add_u32 v218, v218, v219',
               's_lshl_b32 s30, s3, 9', f's_add_u32 s30, s30, {KVS}', 'v_add_u32 v218, s30, v218', 's_lshl_b32 s30, s3, 5', f's_add_u32 s30, s30, {ZS}', 'v_add_u32 v219, s30, v219',
               'v_bfe_u32 v20, v0, 7, 2', 'v_bfe_u32 v21, v0, 4, 2', 'v_lshl_add_u32 v20, v20, 2, v21', 'v_lshlrev_b32 v20, 5, v20',
               'v_lshrrev_b32 v21, 9, v0', 'v_lshl_add_u32 v20, v21, 10, v20', f'v_add_u32 v20, {KVS}, v20', 'v_lshlrev_b32 v21, 6, v21', f'v_add_u32 v21, {ZS}, v21']
            + [f'v_mov_b64 {v(24+i,2)}, 0' for i in range(0, 32, 2)]
            + [f's_mul_i32 s42, s25, {HF_B}', 's_lshl_b32 s31, s21, 11', 's_add_u32 s42, s42, s31', f's_add_u32 s42, s42, {HF}',
               's_lshl_b32 s43, s25, 7', 's_add_u32 s43, s43, s21', f's_add_u32 s43, s43, {LF + FL_O * 32}',
               's_lshl_b32 s44, s26, 7', f's_add_u32 s44, s44, {LF + FL_O * 32}', 's_lshl_b32 s31, s3, 2', 's_lshl_b32 s54, 15, s31', 's_mov_b32 s55, s54',
               f's_mul_i32 s56, s26, {HF_B}', 's_lshl_b32 s31, s3, 13', 's_add_u32 s56, s56, s31', f's_add_u32 s56, s56, {HF}', f's_add_u32 s57, s56, {4 * HF_B}'])
        for n in range(5): rdQ(n)
        n3 = cfg.w3[0] if L == 0 else 0
        for n in range(32):
            if n + 5 < 32: rdQ(n + 5)
            e.wait(tW[n])
            e(f'{MF} {v(aQ,16)}, {v(RING + 4 * (n % 6), 4)}, {v(XB + 4 * n, 4)}, {v(aQ,16) if n else 0}')
            if n >= cfg.gather_n: gs.pop(1)
            elif bg.q: bg.pop(1)
            elif n3 > 0: w3s.pop(1); n3 -= 1
            if n >= 4: fill.pop(3)
        bg.flush(); fill.flush()
        stamp('qgemm')
        e(*p24_addrs())
        softmax(aQ, False, lambda i: gs.pop(1) if i % 6 == 0 and i >= 6 * (cfg.gather_n - 32) else None)
        gs.flush()
        e(f'v_mul_f32 v226, 0x358637bd, v220')
        stamp('smq')
        lre, lchk, lgo = e.label('Lre'), e.label('Lchk'), e.label('Lgo')
        e('s_mov_b32 s61, 0', f'{lre}:')
        for i in range(8):
            e.wait(tG[i]); e(f'{MF16} v[112:115], v[12:15], {v(136+4*i,4)}, {"v[112:115]" if i else 0}')
        e.wait(tG['z'])
        for j, sh in enumerate((8, 4, 2, 1)):
            for r in range(4):
                src = 8 + r if j == 0 else 116 + r
                e(f'v_add_f32 v{116+r}, v{src}, v{src} row_ror:{sh} row_mask:0xf bank_mask:0xf')
        e('v_pk_add_f32 v[120:121], v[116:117], v[118:119]', 'v_cvt_pk_bf16_f32 v122, v112, v113', 'v_add_f32 v120, v120, v121', 'v_cvt_pk_bf16_f32 v123, v114, v115',
          'v_cmp_u_f32 vcc, v120, v112', 'v_cvt_pk_bf16_f32 v116, v116, v117', 'v_cvt_pk_bf16_f32 v117, v118, v119',
          f's_cbranch_vccnz {lchk}', f'{lgo}:')
        c = [f'{lchk}:', 'v_max3_u32 v120, v8, v9, v10', 'v_max_u32 v120, v120, v11']
        for i in range(136, 168, 2): c.append(f'v_max3_u32 v120, v120, v{i}, v{i+1}')
        c += ['v_cmp_eq_u32 vcc, -1, v120', 's_add_u32 s61, s61, 1', f's_cbranch_vccz {lgo}',
              f's_cmp_ge_u32 s61, {cfg.tmo}', f's_cbranch_scc1 {name}_fail', 's_mov_b32 s51, s98']
        for i in range(8):
            if i and i % 3 == 0: c.append('s_add_u32 s51, s51, 3840')
            c.append(f'buffer_load_dwordx4 {v(136+4*i,4)}, v217, {SRD}, s51 offen offset:{(i%3)*1280} sc1')
        c += [gz_ld, 's_waitcnt vmcnt(0)', f's_branch {lre}']
        cold.append('\n'.join(c))
        e('ds_write_b64 v218, v[122:123]', 'ds_write_b64 v219, v[116:117]')
        e('s_mov_b32 s30, 0x0f0f0f0f', 's_mov_b32 s31, 0xf0f0f0f0', 's_waitcnt lgkmcnt(0)', 's_barrier')
        if cfg.stamps: e('v_writelane_b32 v7, s61, ' + str(60 + L))
        stamp('gath')
        e('s_mov_b64 exec, s[30:31]')
        tk, tz = [], []
        for i in range(4): tz.append(e(f'ds_read_b128 {v(40+4*i,4)}, v21 offset:{(i>>1)*32+(i&1)*16}'))
        for i in range(4): tk.append(e(f'ds_read_b128 {v(24+4*i,4)}, v20 offset:{(i>>1)*512+(i&1)*16}'))
        e('s_mov_b64 exec, -1')
        if L == 0: w3s.pop(cfg.w3[1])
        PQ = (EB, EB + 4, EB + 16, EB + 20)
        for i in range(4):
            e.wait(tz[i]); e(f'{MF} v[152:167], {v(40+4*i,4)}, {v(PQ[i],4)}, {"v[152:167]" if i else 0}')
        for i in range(4):
            e.wait(tk[i]); e(f'{MF} v[136:151], {v(24+4*i,4)}, {v(PQ[i],4)}, {"v[136:151]" if i else 0}')
            for j in range(4): e(f'v_accvgpr_read_b32 v{104+4*i+j}, a{240+4*i+j}')
        e('v_add_f32 v152, v152, v226', 'v_rcp_f32 v152, v152')
        for u in range(2):
            for i in range(0, 8, 2): e(f'v_pk_mul_f32 {v(136+8*u+i,2)}, {v(136+8*u+i,2)}, v[152:153] op_sel:[0,0] op_sel_hi:[1,0]')
            for i in range(4): e(f'v_cvt_pk_bf16_f32 v{136+8*u+i}, v{136+8*u+2*i}, v{137+8*u+2*i}')
            t = e(f'buffer_store_dwordx4 {v(136+8*u,4)}, v0, {SRD}, s42 offen offset:{u*1024}')
        e.wait(t); stamp('odrain')
        flag_store('s43')
        if L == 0: w3s.pop(cfg.w3[2])
        t = e(poll_ld('v252', 's44'))
        e(*x_soffs(1, FL_X1))
        poll_check(t, 'v252', 's44', 's[54:55]', L + 1)
        stamp('opolled')
        tA, tB = {}, {}
        xs = Stream(frag_loads(lambda i: v(8 + 4 * i, 4), 8, 's56', tA) + frag_loads(lambda i: v(40 + 4 * i, 4), 8, 's57', tB))
        xs.pop(8)
        if L == 0: e.wait(bgW2t[15])
        A2 = ((136, 152), (168, 184))
        def red_write(blk_acc, off):
            return [f'ds_write_b128 v248, {v(blk_acc[ft] + 4 * a_, 4)} offset:{off + (8 * ft + 4 * (a_ >> 1) + (a_ & 1)) * 512}' for ft in range(2) for a_ in range(4)]
        def red_read(dst, off):
            return [e(f'ds_read_b128 {v(dst + 8 * pw + 4 * ee, 4)}, v249 offset:{off + pw * 8192 + ee * 512}') for pw in range(4) for ee in range(2)]
        wr = Stream(red_write(A2[0], 0))
        for blk in range(2):
            for ks in range(8):
                e.wait((tA, tB)[blk][ks])
                for ft in range(2):
                    acc = v(A2[blk][ft], 16)
                    e(f'{MF} {acc}, {a(8 * ks + 4 * ft, 4)}, {v(8 + 32 * blk + 4 * ks, 4)}, {acc if ks else 0}')
                    if blk == 1 and ks >= 1: wr.pop(1)
                xs.pop(1)
                if blk == 1 and ks == 5:
                    e('s_waitcnt lgkmcnt(0)', 's_barrier')
                    tr = red_read(72, 0)
        stamp('p2gemm')
        def finalize(tr, T, res, scale):
            e.wait(tr[3])
            for i in range(0, 8, 2): e(f'v_pk_add_f32 {v(T+i,2)}, {v(T+i,2)}, {v(T+8+i,2)}')
            if scale is None:
                for i in range(0, 8, 2): e(f'v_pk_add_f32 {v(res+i,2)}, {v(res+i,2)}, {v(T+i,2)}')
            e.wait(tr[7])
            for i in range(0, 8, 2): e(f'v_pk_add_f32 {v(T+16+i,2)}, {v(T+16+i,2)}, {v(T+24+i,2)}')
            if scale is None:
                for i in range(0, 8, 2): e(f'v_pk_add_f32 {v(res+i,2)}, {v(res+i,2)}, {v(T+16+i,2)}')
            else:
                for i in range(0, 8, 2): e(f'v_pk_add_f32 {v(T+i,2)}, {v(T+i,2)}, {v(T+16+i,2)}')
                for i in range(0, 8, 2): e(f'v_pk_fma_f32 {v(res+i,2)}, {v(T+i,2)}, v[254:255], {v(res+i,2)} op_sel:[0,{scale},0] op_sel_hi:[1,{scale},1]')
            for i in range(4): e(f'v_cvt_pk_bf16_f32 v{T+i}, v{res+2*i}, v{res+2*i+1}')
        finalize(tr, 72, 104, None)
        tXA = e(f'buffer_store_dwordx4 v[72:75], v250, {SRD}, s42 offen')
        e(*red_write(A2[1], 32 * KB))
        stats_store(104, 80, 's45')
        e.wait(tXA); flag_store('s43')
        stamp('x1Aflag')
        if L == 0: w3s.pop(cfg.w3[3])
        e('s_waitcnt lgkmcnt(0)', 's_barrier')
        tr = red_read(8, 32 * KB)
        e(*x_next)
        e('s_lshl_b32 s44, s27, 7', f's_add_u32 s44, s44, {LF + FL_X1 * 32}')
        finalize(tr, 8, 112, None)
        e(f'buffer_store_dwordx4 v[8:11], v250, {SRD}, s42 offen')
        stats_store(112, 84, 's45')
        tP = e(poll_ld('v3', 's44'))
        for i in range(16): e(f'v_accvgpr_write_b32 a{240+i}, v{104+i}')
        e('s_lshl_b32 s42, s27, 15', f's_add_u32 s42, s42, {XF}', f's_add_u32 s53, s42, {128 * KB}',
          f's_mul_i32 s56, s26, {HF_B}', f's_mul_i32 s31, s3, {22 * KB}', 's_add_u32 s56, s56, s31', f's_add_u32 s56, s56, {HF}', f's_add_u32 s57, s56, {4 * HF_B}',
          's_lshl_b32 s58, s26, 7', f's_add_u32 s58, s58, {LF + FL_H * 32}',
          's_mul_i32 s31, s3, 7', 's_lshl_b32 s54, 0xff, s31', 's_cmp_eq_u32 s3, 3', 's_cselect_b32 s54, 0x1fc00000, s54', 's_mov_b32 s55, -1',
          'v_lshrrev_b32 v6, 9, v0', 'v_mul_u32_u24 v6, 480, v6', 'v_add_u32 v6, v6, v3',
          's_lshl_b32 s59, s26, 11', f's_add_u32 s59, s59, {ST + ST_L}',
          f's_mul_i32 s47, s27, {HF_B}', f's_mul_i32 s31, s19, {3 * KB}', 's_add_u32 s47, s47, s31', f's_add_u32 s47, s47, {HF}',
          's_lshl_b32 s48, s27, 7', 's_add_u32 s48, s48, s19', f's_add_u32 s48, s48, {LF + FL_H * 32}')
        if L == 0:
            e(f's_mul_i32 s49, s23, {176 * KB}', f's_mul_i32 s31, s3, {44 * KB}', 's_add_u32 s49, s49, s31', f's_add_u32 s49, s49, {W4P}',
              f's_mul_i32 s50, s22, {11 * KB}', 's_add_u32 s50, s50, s49')
            w1_src(0, 's40'); e(f's_add_u32 s41, s28, {R1}', f's_add_u32 s51, s40, {32 * KB}')
        e.wait(tP); flag_store('s43')
        aA, aB = 136, 184
        hslot = lambda blk, i: (8 + 4 * i) if blk == 0 else (96 + 4 * i if i < 10 else 184 + 4 * (i - 10))
        tHA, tHB, tS4 = {}, {}, {}
        tWk, tWv = {}, {}
        def l0_bg(t4, tk): return frag_loads(lambda i: a(64 + 4 * i, 4), 44, 's49', t4) + dma_loads(8, 's40', 's41', tk)
        def st4_loads(tk):
            e('v_and_b32 v136, 0x70, v0', 's_lshl_b32 s30, s3, 7', 'v_add_u32 v136, s30, v136', 'v_lshlrev_b32 v136, 1, v136', 'v_lshrrev_b32 v137, 9, v0', 'v_lshl_add_u32 v136, v137, 10, v136',
              's_add_u32 s31, s59, 8192')
            e(f'buffer_load_dwordx4 v[168:171], v136, {SRD}, s59 offen sc1', f'buffer_load_dwordx4 v[172:175], v136, {SRD}, s59 offen offset:16 sc1',
              f'buffer_load_dwordx4 v[176:179], v136, {SRD}, s31 offen sc1')
            tk[0] = e(f'buffer_load_dwordx4 v[180:183], v136, {SRD}, s31 offen offset:16 sc1')
        lskip, lp4 = e.label('Lskip3'), e.label('Lp4')
        e('s_cmp_ge_u32 s19, 29', f's_cbranch_scc1 {lskip}')
        tW = {}
        def rd3(n):
            if L == 0 and n < 96 and n % 24 == 0:
                i = n // 4 + 5
                while i not in bgW3t: w3s.pop(1)
                e.wait(bgW3t[i]); e('s_barrier')
            r, o = ldsaddr((n % 96) * 1024)
            tW[n] = e(f'ds_read_b128 {v(RING + 4 * (n % 6), 4)}, {r} offset:{o}')
        for n in range(5): rd3(n)
        poll_check(tP, 'v3', 's44', None, L + 1)
        stamp('x1polled')
        tX = {}; tXB = {}
        xs = Stream(frag_loads(lambda i: v(XB + 4 * i, 4), 32, 's42', tX))
        xsB = frag_loads(lambda i: v(XB + 4 * i, 4), 32, 's53', tXB)
        xs.pop(6)
        e('s_add_u32 s44, s44, 512')
        bg = Stream(l0_bg(bgW4t, tWk) if L == 0 else [])
        def h_epi(acc):
            q = []
            for t in range(3):
                b = acc + 16 * t
                for i in range(8): q.append(f'v_max_f32 v{b+i}, 0, v{b+i}')
                for i in range(0, 8, 2): q.append(f'v_pk_mul_f32 {v(b+i,2)}, {v(b+i,2)}, {v(b+8+i,2)}')
                for i in range(4): q.append(f'v_cvt_pk_bf16_f32 v{b+i}, v{b+2*i}, v{b+2*i+1}')
                q.append(f'buffer_store_dwordx4 {v(b,4)}, v0, {SRD}, s47 offen offset:{t*1024}')
            return q
        epi = h_epi(aA); tH = None; hs = Stream()
        D = cfg.D3
        for n in range(192):
            blk, ks, t = n // 96, (n % 96) // 3, n % 3
            if n + 5 < 192: rd3(n + 5)
            e.wait(tW[n], (tX, tXB)[blk][ks])
            acc = v((aA, aB)[blk] + 16 * t, 16)
            e(f'{MF} {acc}, {v(RING + 4 * (n % 6), 4)}, {v(XB + 4 * ks, 4)}, {acc if ks else 0}')
            if blk == 0:
                if t == 0 and ks < D - 6: xs.pop(1)
                if t == 0 and ks == 32 - D - 6: tPB = e(poll_ld('v3', 's44'))
                if t == 1 and ks == 32 - D - 1:
                    poll_check(tPB, 'v3', 's44', None, L + 1); xs.q += xsB
                if L == 0 and t == 1 and w3s.q: w3s.pop(1)
                if L == 0 and t == 1 and ks == cfg.touch_w4:
                    e('v_lshlrev_b32 v184, 3, v0', 's_mov_b32 exec_hi, 0xfff', f'buffer_load_dword v185, v184, {SRD}, s50 offen', f's_add_u32 s50, s50, {44 * 128}',
                      f'buffer_load_dword v185, v184, {SRD}, s50 offen', 's_mov_b64 exec, -1')
            else:
                if ks >= 1:
                    for _ in range(3):
                        if epi: tH = e(epi.pop(0)) or tH
                if ks == 12 and t == 0:
                    e.wait(tH); flag_store('s48')
                if ks == 17 and t == 0: tPH = e(poll_ld('v6', 's58'))
                if ks == 22 and t == 0:
                    poll_check(tPH, 'v6', 's58', 's[54:55]', L + 1)
                    hs.q = frag_loads(lambda i: v(hslot(0, i), 4), 22, 's56', tHA)
                    hs.q.insert(10, lambda: st4_loads(tS4))
            if t == 2:
                if xs.q: xs.pop(1)
                else: hs.pop(1)
            late = blk == 1 and ks > 22
            if t == 0 and late and (ks & 1): hs.pop(1)
            if t == 0 and not late and 32 * blk + ks >= cfg.w4_from: bg.pop(1)
        stamp('p3gemm')
        e(f's_add_u32 s47, s47, {4 * HF_B}')
        for i, x in enumerate(h_epi(aB)):
            tH = e(x) or tH
        nHA = len(tHA); nbg = len(bg.q)
        e(f'{lp4}:')
        sv = (e.ins, e.vm, e.lg, e.vm_done, e.lg_done); e.ins = []
        e(f'{lskip}:')
        if L == 0:
            q = l0_bg({}, {})
            for f in q[:len(q) - nbg]: f()
        t = e(poll_ld('v6', 's58')); poll_check(t, 'v6', 's58', 's[54:55]', L + 1)
        for f in frag_loads(lambda i: v(hslot(0, i), 4), 22, 's56', {})[:nHA]: f()
        assert 0 in tS4
        st4_loads({})
        e('s_waitcnt vmcnt(0)', f's_branch {lp4}')
        cold.append(e.text())
        e.ins, e.vm, e.lg, e.vm_done, e.lg_done = sv
        stamp('hBst')
        A4 = ((136, 152), (168, 232))
        e('s_add_u32 s48, s48, 512', 's_add_u32 s58, s58, 512', 's_mov_b32 s55, 0')
        fill = Stream(p24_addrs(R2) + [lambda: e.wait(tS4[0])] + stats_rstd(e, 168, 254, True) + stats_rstd(e, 176, 255, True)
                      + (x_soffs(0, FL_X2) if not last else soff_rowmajor + ['v_and_b32 v250, 0x70, v0', 'v_lshlrev_b32 v250, 6, v250', 'v_lshrrev_b32 v253, 7, v0', 'v_lshl_add_u32 v250, v253, 4, v250']))
        def gemm4(blk, toks, hook):
            lsk = e.label('Lk3')
            for ks in range(22):
                if ks == 20: e('s_cmp_eq_u32 s3, 3', f's_cbranch_scc1 {lsk}')
                while ks not in toks: hs.pop(1)
                if L == 0 and blk == 0:
                    while 2 * ks + 1 not in bgW4t: bg.pop(1)
                    e.wait(bgW4t[2 * ks + 1])
                e.wait(toks[ks])
                for ft in range(2):
                    acc = v(A4[blk][ft], 16)
                    e(f'{MF} {acc}, {a(64 + 8 * ks + 4 * ft, 4)}, {v(hslot(blk, ks), 4)}, {acc if ks else 0}')
                    if ks < 20: hook(ks, ft)
            e(f'{lsk}:')
        P = {}
        def hookA(ks, ft):
            fill.pop(3)
            if ft == 0:
                if hs.q: hs.pop(1)
                else: bg.pop(1)
            if ft == 1:
                if ks < 10: bg.pop(1)
                if ks == cfg.hB_flag:
                    e.wait(tH); flag_store('s48')
                if ks == cfg.hB_poll: P['t'] = e(poll_ld('v3', 's58'))
                if ks == cfg.hB_chk:
                    hs.flush(); bg.flush()
                    poll_check(P['t'], 'v3', 's58', 's[54:55]', L + 1)
                    hs.q = frag_loads(lambda i: v(hslot(1, i), 4), 22, 's57', tHB)
                    if not last: hs.q += frag_loads(lambda i: v(40 + 4 * i, 4), 8, 's51', tWv, stride=4096)
                    hs.pop(2)
        gemm4(0, tHA, hookA)
        fill.flush()
        e('s_barrier')
        hs.pop(1)
        for i, x in enumerate(red_write(A4[0], 0)):
            e(x)
            for j in range(2): e(f'v_accvgpr_read_b32 v{72+2*i+j}, a{240+2*i+j}')
            if i % 3 == 2: hs.pop(1)
        e('s_waitcnt lgkmcnt(0)', 's_barrier')
        stamp('p4A')
        tr = red_read(8, 0)
        hs.pop(2)
        OS = SRD if not last else 's[12:15]'
        finalize(tr, 8, 72, 0)
        e('s_barrier')
        t = e(f'buffer_store_dwordx4 v[8:11], v250, {OS}, s42 offen')
        if not last: t = stats_store(72, 16, 's45')
        def hookB(ks, ft):
            if ft == 0: hs.pop(1)
            if ks == 8 and ft == 1 and not last:
                e.wait(t); flag_store('s43')
            if ks == 19 and ft == 1: hs.flush()
        gemm4(1, tHB, hookB)
        stamp('p4Bgemm')
        e(*x_next)
        e(*red_write(A4[1], 0))
        e('s_waitcnt lgkmcnt(0)', 's_barrier')
        tr = red_read(8, 0)
        finalize(tr, 8, 80, 1)
        t = e(f'buffer_store_dwordx4 v[8:11], v250, {OS}, s42 offen')
        if not last:
            t = stats_store(80, 16, 's45')
            e('s_barrier', 'v_add_u32 v6, s28, v2')
            e.wait(tWv[7])
            for i in range(8):
                e(f'ds_write_b128 v6, {v(40+4*i,4)} offset:{4096*i}')
                for j in range(2): e(f'v_accvgpr_write_b32 a{240+2*i+j}, v{72+2*i+j}')
            e.wait(t); flag_store('s43')
            stamp('end')
            e('s_lshl_b32 s44, s25, 7', f's_add_u32 s44, s44, {LF + FL_X2 * 32}')
            t = e(poll_ld('v3', 's44'))
            e(*p1_pre)
            e(f's_add_u32 s98, s98, {KV_L}', f's_add_u32 s99, s99, {KV_L}', 's_waitcnt lgkmcnt(0)')
            poll_check(t, 'v3', 's44', None, 1)
            e('v_mov_b32 v5, 2')
            stamp('x2polled')
        else:
            e('v_mov_b32 v4, s80', f's_mov_b32 s31, {EPOCH}', 's_or_b32 s30, s2, s3', 's_cselect_b64 exec, 0, 1', f'buffer_store_dword v4, off, {SRD}, s31', 's_mov_b64 exec, -1')
            stamp('end')
    if cfg.stamps:
        e('s_waitcnt vmcnt(0)', 's_memrealtime s[62:63]', 's_waitcnt lgkmcnt(0)', 'v_writelane_b32 v7, s62, 63')
        e('s_lshl_b32 s30, s2, 2', 's_add_u32 s30, s30, s3', 's_lshl_b32 s30, s30, 8', f's_add_u32 s30, s30, {STAMP}', 'v_lshrrev_b32 v6, 2, v0',
          f'buffer_store_dword v7, v6, {SRD}, s30 offen')
    e(f'{name}_end:', 's_endpgm')
    for c in cold: e(c)
    e(f"""{name}_fail:
    v_mov_b32 v4, 0
    v_mov_b32 v6, 0xdead
    global_store_dword v4, v6, s[16:17]
    s_endpgm""")
    for i in range(16): e('s_nop 0')
    e('s_endpgm')
    e.stamp_names = st['names']
    return e
Cfg.hB_flag = 5; Cfg.hB_poll = 9; Cfg.hB_chk = 14
def build(out, **kw):
    cfg = Cfg()
    for k, x in kw.items():
        assert hasattr(cfg, k), k
        setattr(cfg, k, x)
    e1 = gen(cfg)
    ref = open('cdna_kernels/' + KNAME + '.s.ref').read().split('\n')
    hdr = '\n'.join(ref[:12]) + '\n'
    txt = (hdr + f'; @launch grid=(256,1,1) block=(256,1,1) lds=163840\n' + TOP + head(KNAME + '_kernel') + 'K1_start:\n' + e1.text() + desc(KNAME + '_kernel', 512, 102, 256))
    open(out, 'w').write(txt)
    json.dump(e1.stamp_names, open(out + '.stamps.json', 'w'))
    print(out, 'instrs', len(e1.ins), 'nops', e1.nops)
if __name__ == '__main__':
    build('v2.s'); build('v2s.s', stamps=True)
```
